```python
import torch

def _softmax(x, axis=-1):
    return torch.softmax(x, dim=axis)
def _gelu(x):
    return torch.nn.functional.gelu(x, approximate="tanh")
def _silu(x):
    return torch.nn.functional.silu(x)
def _sigmoid(x):
    return torch.sigmoid(x)
def _layernorm(x, axis=-1, eps=1e-5):
    m = x.mean(dim=axis, keepdim=True)
    v = x.var(dim=axis, keepdim=True, unbiased=False)
    return (x - m) / torch.sqrt(v + eps)
def _scatter_add(tgt, idx, src, axis=0):
    return tgt.clone().index_add_(axis, idx, src)
def _segment_sum(src, seg, n):
    out = torch.zeros((n,) + src.shape[1:], dtype=src.dtype)
    return out.index_add_(0, seg, src)
def _pad(x, pw):
    flat = tuple(v for pair in reversed(pw) for v in pair)
    return torch.nn.functional.pad(x, flat)

kernel_name = 'parallel_sum__compressed_kv_cla__dense_activation_gelu__prompt'

def setup_inputs():

    _w = (lambda a: (lambda t: t.to(torch.bfloat16) if t.is_floating_point() else t)(torch.as_tensor(a)))
    def _A_setup():
        B, H, Sq, Sk, D, M = 1, 32, 2048, 2048, 128, 512
        Dc = 4 * D
        return {
            "x": _w((lambda *s: torch.randn(*s, dtype=torch.bfloat16) * 0.05)(B, Sq, M)),
            "c_kv": _w((lambda *s: torch.randn(*s, dtype=torch.bfloat16) * 0.4)(B, Sk, Dc)),
            "w_q": _w((lambda *s: torch.randn(*s, dtype=torch.bfloat16) * 3.2)(M, H, D) * (M ** -0.5)),
            "w_uk": _w((lambda *s: torch.randn(*s, dtype=torch.bfloat16) * 3.2)(Dc, H, D) * (Dc ** -0.5)),
            "w_uv": _w((lambda *s: torch.randn(*s, dtype=torch.bfloat16) * 0.4)(Dc, H, D) * (Dc ** -0.5)),
            "w_o": _w((lambda *s: torch.randn(*s, dtype=torch.bfloat16) * 0.4)(H, D, M) * ((H * D) ** -0.5)),
        }
    _A_in = _A_setup()

    def _B_setup():
        B, S, D, F = 1, 2048, 512, 1376
        return {
            "x": _w((lambda *s: torch.randn(*s, dtype=torch.bfloat16) * 0.05)(B, S, D)),
            "w1": _w((lambda *s: torch.randn(*s, dtype=torch.bfloat16) * 0.4)(D, F) * (D ** -0.5)),
            "b1": _w((lambda *s: torch.randn(*s, dtype=torch.bfloat16) * 12.8)(F) * 0.01),
            "w2": _w((lambda *s: torch.randn(*s, dtype=torch.bfloat16) * 0.2)(F, D) * (F ** -0.5)),
            "b2": _w((lambda *s: torch.randn(*s, dtype=torch.bfloat16) * 3.2)(D) * 0.01),
        }
    _B_in = _B_setup()

    return {
        "A_x": _A_in["x"],
        "A_c_kv": _A_in["c_kv"],
        "A_w_q": _A_in["w_q"],
        "A_w_uk": _A_in["w_uk"],
        "A_w_uv": _A_in["w_uv"],
        "A_w_o": _A_in["w_o"],
        "B_x": _B_in["x"],
        "B_w1": _B_in["w1"],
        "B_b1": _B_in["b1"],
        "B_w2": _B_in["w2"],
        "B_b2": _B_in["b2"],
    }

def reference(A_x, A_c_kv, A_w_q, A_w_uk, A_w_uv, A_w_o, B_x, B_w1, B_b1, B_w2, B_b2):
    def _A_ref(x, c_kv, w_q, w_uk, w_uv, w_o):
        B, Sq, M = x.shape[0], x.shape[1], x.shape[2]
        Sk = c_kv.shape[1]
        H, D = w_q.shape[1], w_q.shape[2]
        q = torch.einsum("bqm,mhd->bhqd", x, w_q)
        k = torch.einsum("bkc,chd->bhkd", c_kv, w_uk)
        v = torch.einsum("bkc,chd->bhkd", c_kv, w_uv)
        scores = torch.einsum("bhqd,bhkd->bhqk", q, k) * (D ** -0.5)
        off = Sk - Sq
        qi = torch.arange(Sq)[:, None]
        kj = torch.arange(Sk)[None, :]
        cmask = kj <= (qi + off)
        scores = torch.where(cmask[None, None], scores, -1e9)
        p = _softmax(scores, axis=-1)
        ctx = torch.einsum("bhqk,bhkd->bhqd", p, v)
        return torch.einsum("bhqd,hdm->bqm", ctx, w_o)

    def _B_ref(x, w1, b1, w2, b2):
        h = torch.einsum("bsd,df->bsf", x, w1) + b1
        h = _gelu(h)
        return torch.einsum("bsf,fd->bsd", h, w2) + b2

    x = A_x
    xn = _layernorm(x, axis=-1)
    return x + _A_ref(xn, A_c_kv, A_w_q, A_w_uk, A_w_uv, A_w_o) + _B_ref(xn, B_w1, B_b1, B_w2, B_b2)
```

```python
import re


class Reg:
    def __init__(self, f, base, n=1):
        self.f, self.base, self.n = f, base, n

    def __str__(self):
        if self.n == 1:
            return f"{self.f}{self.base}"
        return f"{self.f}[{self.base}:{self.base + self.n - 1}]"

    __repr__ = __str__

    def __getitem__(self, i):
        if isinstance(i, slice):
            a = 0 if i.start is None else i.start
            b = self.n if i.stop is None else i.stop
            assert 0 <= a < b <= self.n, (self, i)
            return Reg(self.f, self.base + a, b - a)
        assert 0 <= i < self.n, (self, i)
        return Reg(self.f, self.base + i, 1)

    def regs(self):
        return {(self.f, self.base + k) for k in range(self.n)}


class Alloc:
    def __init__(self, f, start, limit):
        self.f, self.next, self.limit = f, start, limit
        self.hi = start

    def __call__(self, n=1, align=None):
        if align is None:
            align = 1 if n == 1 else (2 if n == 2 else 4)
            if self.f == 's' and n >= 2:
                align = 2 if n == 2 else 4
        b = (self.next + align - 1) // align * align
        assert b + n <= self.limit, f"out of {self.f} registers ({b}+{n} > {self.limit})"
        self.next = b + n
        self.hi = max(self.hi, self.next)
        return Reg(self.f, b, n)


_reg_re = re.compile(r"^(v|s|a)(\d+)$")
_rng_re = re.compile(r"^(v|s|a)\[(\d+):(\d+)\]$")


def parse_regs(tok):
    tok = tok.strip()
    neg = tok.startswith('-')
    if neg:
        tok = tok[1:]
    if tok.startswith('|') and tok.endswith('|'):
        tok = tok[1:-1]
    m = _reg_re.match(tok)
    if m:
        return {(m.group(1), int(m.group(2)))}
    m = _rng_re.match(tok)
    if m:
        return {(m.group(1), k) for k in range(int(m.group(2)), int(m.group(3)) + 1)}
    if tok == 'vcc':
        return {('s', 'vcc')}
    if tok == 'm0':
        return {('s', 'm0')}
    if tok == 'exec':
        return {('s', 'exec')}
    if tok == 'scc':
        return {('s', 'scc')}
    return set()


TRANS = ('v_exp_f32', 'v_log_f32', 'v_rcp_f32', 'v_rsq_f32', 'v_sqrt_f32', 'v_sin_f32', 'v_cos_f32')


class Ins:
    __slots__ = ("op", "ops", "mods", "wr", "rd", "kind", "states", "A", "B", "C", "passes", "label",
                 "target", "comment", "wide", "data", "raw")

    def text(self):
        if self.kind == 'label':
            return f"{self.label}:"
        if self.kind == 'raw':
            return self.raw
        s = "    " + self.op
        if self.ops:
            s += " " + ", ".join(self.ops)
        if self.mods:
            s += " " + self.mods
        if self.comment:
            s += "    ; " + self.comment
        return s


def classify(op, ops, mods):
    R = [parse_regs(o) for o in ops]
    allr = set().union(*R) if R else set()
    if op.startswith('v_mfma'):
        return 'mfma', R[0], R[1] | R[2] | R[3]
    if op.startswith('v_cmp'):
        return 'valu', R[0], set().union(*R[1:]) if len(R) > 1 else set()
    if op in ('v_readfirstlane_b32', 'v_readlane_b32'):
        return 'valu', R[0], set().union(*R[1:])
    if op.startswith('v_permlane'):
        return 'valu', R[0] | R[1], R[0] | R[1]
    if op.startswith('v_fmac') or op.startswith('v_pk_fmac'):
        return 'valu', R[0], allr
    if op == 'v_cndmask_b32':
        rd = set().union(*R[1:])
        if len(ops) == 3:
            rd |= {('s', 'vcc')}
        return 'valu', R[0], rd
    if op == 'v_nop':
        return 'valu', set(), set()
    if op.startswith('v_'):
        k = 'trans' if op in TRANS else 'valu'
        return k, R[0], set().union(*R[1:]) if len(R) > 1 else set()
    if op.startswith('ds_read') or op.startswith('ds_swizzle') or op.startswith('ds_bpermute'):
        return 'ds', R[0], set().union(*R[1:])
    if op.startswith('ds_write'):
        return 'ds', set(), allr
    if op.startswith('buffer_load') or op.startswith('global_load'):
        if ' lds' in (' ' + mods) or op.startswith('global_load_lds'):
            return 'vmem_lds', set(), allr | {('s', 'm0')}
        return 'vmem_load', R[0], set().union(*R[1:])
    if op.startswith('buffer_store') or op.startswith('global_store'):
        return 'vmem_store', set(), allr
    if op.startswith('buffer_atomic') or op.startswith('global_atomic'):
        if 'sc0' in mods:
            return 'vmem_load', R[0], allr
        return 'vmem_store', set(), allr
    if op.startswith('s_load') or op.startswith('s_buffer_load'):
        return 'smem', R[0], set().union(*R[1:])
    if op in ('s_branch',) or op.startswith('s_cbranch'):
        return 'branch', set(), set()
    if op.startswith('s_cmp'):
        return 'salu', {('s', 'scc')}, allr
    if op in ('s_waitcnt', 's_barrier', 's_nop', 's_endpgm', 's_setprio', 's_sleep'):
        return 'other', set(), set()
    if op.startswith('s_'):
        return 'salu', R[0] if R else set(), set().union(*R[1:]) if len(R) > 1 else set()
    raise ValueError("unknown op " + op)


def vset(s):
    return {x for x in s if x[0] in ('v', 'a')}


def sset(s):
    return {x for x in s if x[0] == 's'}


MFMA_PASSES = {'v_mfma_f32_32x32x16_bf16': 8, 'v_mfma_f32_16x16x32_bf16': 4}


def required_gap(prev, cur):
    need = 0
    pk, ck = prev.kind, cur.kind
    if pk == 'mfma':
        D = prev.wr
        p = prev.passes
        nv = {8: 12, 4: 8}[p]
        if ck in ('valu', 'trans', 'vmem_load', 'vmem_store', 'vmem_lds', 'ds'):
            if (cur.rd | cur.wr) & D:
                need = max(need, nv)
        if ck == 'mfma':
            if (cur.A | cur.B) & D:
                need = max(need, nv)
            if cur.C & D and cur.C != D:
                need = max(need, {8: 10, 4: 6}[p])
        if ck in ('valu', 'trans') and (cur.wr & prev.C):
            need = max(need, {8: 7, 4: 3}[p])
    elif pk in ('valu', 'trans'):
        W = vset(prev.wr)
        if W:
            if ck == 'mfma' and (cur.A | cur.B | cur.C) & W:
                need = max(need, 2)
            if cur.op in ('v_readfirstlane_b32', 'v_readlane_b32') and cur.rd & W:
                need = max(need, 1)
            if cur.op.startswith('v_permlane') and cur.rd & W:
                need = max(need, 2)
            if pk == 'trans' and ck in ('valu', 'trans') and cur.rd & W:
                need = max(need, 1)
        SW = sset(prev.wr)
        if SW:
            if ck in ('valu', 'trans') and (cur.rd & SW):
                need = max(need, 2)
            if ck in ('vmem_load', 'vmem_store', 'vmem_lds') and (cur.rd & SW):
                need = max(need, 5)
    elif pk == 'salu':
        if ('s', 'm0') in prev.wr and ck == 'vmem_lds':
            need = max(need, 1)
    if pk == 'vmem_store' and prev.wide:
        if vset(cur.wr) & prev.data:
            need = max(need, 2 if ck in ('valu', 'trans') else 1)
    return need


class Gen:
    def __init__(self, auto_hazard=True):
        self.ins = []
        self.auto = auto_hazard
        self.lds_q = []
        self.vm_q = []
        self.nop_inserted = 0
        self._lab = 0

    def _mk(self, op, ops, mods="", comment=None):
        i = Ins()
        i.op, i.ops, i.mods, i.comment = op, [str(o) for o in ops], mods, comment
        i.label = i.target = i.raw = None
        i.kind, i.wr, i.rd = classify(op, i.ops, mods)
        i.states = 1
        i.A = i.B = i.C = set()
        i.passes = 0
        i.wide = False
        i.data = set()
        if op == 's_nop':
            i.states = int(i.ops[0]) + 1
        if i.kind == 'mfma':
            i.A, i.B, i.C = parse_regs(i.ops[1]), parse_regs(i.ops[2]), parse_regs(i.ops[3])
            i.passes = MFMA_PASSES[op]
        if i.kind == 'vmem_store':
            i.data = vset(parse_regs(i.ops[0]))
            i.wide = len(i.data) >= 3
        if i.kind == 'branch':
            i.target = i.ops[0]
        return i

    def _gap_needed(self, cur):
        need = 0
        dist = 0
        for prev in reversed(self.ins):
            if dist >= 20:
                break
            if prev.kind in ('label', 'raw'):
                continue
            r = required_gap(prev, cur)
            if r > dist:
                need = max(need, r - dist)
            dist += prev.states
        return need

    def I(self, op, *ops, mods="", comment=None, tag=None):
        i = self._mk(op, ops, mods, comment)
        if self.auto:
            n = self._gap_needed(i)
            while n > 0:
                k = min(n, 16)
                nop = self._mk('s_nop', [k - 1])
                self.ins.append(nop)
                self.nop_inserted += k
                n -= k
        self.ins.append(i)
        if i.kind == 'ds':
            self.lds_q.append(tag)
        elif i.kind == 'smem':
            self.lds_q.append(tag if tag is not None else 'smem')
        elif i.kind in ('vmem_load', 'vmem_store', 'vmem_lds'):
            self.vm_q.append(tag)
        return i

    def label(self, name):
        i = Ins()
        i.kind, i.label, i.op, i.ops, i.mods, i.comment = 'label', name, None, [], "", None
        i.states = 0
        self.ins.append(i)

    def newlabel(self, stem="L"):
        self._lab += 1
        return f"{stem}_{self._lab}"

    def raw(self, text):
        i = Ins()
        i.kind, i.raw, i.states = 'raw', text, 0
        i.op, i.ops, i.mods, i.comment, i.label = None, [], "", None, None
        self.ins.append(i)

    def comment(self, text):
        self.raw("    ; " + text)

    def wait_lds(self, tag):
        if tag not in self.lds_q:
            return
        idx = len(self.lds_q) - 1 - self.lds_q[::-1].index(tag)
        n = len(self.lds_q) - idx - 1
        assert n <= 15, n
        self.I('s_waitcnt', f"lgkmcnt({n})")
        self.lds_q = self.lds_q[idx + 1:]

    def wait_lds_all(self):
        self.I('s_waitcnt', "lgkmcnt(0)")
        self.lds_q = []

    def wait_vm(self, tag):
        if tag not in self.vm_q:
            return
        idx = len(self.vm_q) - 1 - self.vm_q[::-1].index(tag)
        n = len(self.vm_q) - idx - 1
        assert n <= 63, n
        self.I('s_waitcnt', f"vmcnt({n})")
        self.vm_q = self.vm_q[idx + 1:]

    def wait_vm_all(self):
        self.I('s_waitcnt', "vmcnt(0)")
        self.vm_q = []

    def wait_vm_n(self, n):
        self.I('s_waitcnt', f"vmcnt({n})")
        if n < len(self.vm_q):
            self.vm_q = self.vm_q[len(self.vm_q) - n:]

    def buf_load(self, width, dst, voff, srd, soff, offset=0, tag=None, mods="", comment=None):
        assert 0 <= offset <= 4095, offset
        m = "offen" + (f" offset:{offset}" if offset else "") + (" " + mods if mods else "")
        return self.I(f"buffer_load_{width}", dst, voff, srd, soff, mods=m, tag=tag, comment=comment)

    def buf_load_lds(self, voff, srd, soff, offset=0, tag=None, width="dwordx4", comment=None):
        assert 0 <= offset <= 4095, offset
        m = "offen" + (f" offset:{offset}" if offset else "") + " lds"
        return self.I(f"buffer_load_{width}", voff, srd, soff, mods=m, tag=tag, comment=comment)

    def buf_store(self, width, data, voff, srd, soff, offset=0, tag=None, mods="", comment=None):
        assert 0 <= offset <= 4095, offset
        m = "offen" + (f" offset:{offset}" if offset else "") + (" " + mods if mods else "")
        return self.I(f"buffer_store_{width}", data, voff, srd, soff, mods=m, tag=tag, comment=comment)

    def ds_read(self, op, dst, addr, offset=0, tag=None, comment=None):
        assert 0 <= offset <= 65535, offset
        return self.I(op, dst, addr, mods=(f"offset:{offset}" if offset else ""), tag=tag, comment=comment)

    def ds_write(self, op, addr, data, offset=0, tag=None):
        assert 0 <= offset <= 65535, offset
        return self.I(op, addr, data, mods=(f"offset:{offset}" if offset else ""), tag=tag)

    def verify_edges(self, window=24):
        labels = {i.label: k for k, i in enumerate(self.ins) if i.kind == 'label'}
        problems = []
        real = lambda seq: [x for x in seq if x.kind not in ('label', 'raw')]
        for k, b in enumerate(self.ins):
            if b.kind != 'branch' or b.target not in labels:
                continue
            t = labels[b.target]
            before = real(self.ins[max(0, k - 3 * window):k + 1])[-window:]
            after = real(self.ins[t:t + 3 * window])[:window]
            cut = []
            for x in after:
                cut.append(x)
                if x.op in ('s_branch', 's_endpgm'):
                    break
            for ai, cur in enumerate(cut):
                dist = sum(x.states for x in cut[:ai])
                for prev in reversed(before):
                    if dist >= 20:
                        break
                    r = required_gap(prev, cur)
                    if r > dist:
                        problems.append((b.target, prev.text().strip(), cur.text().strip(), r, dist))
                    dist += prev.states
        return problems

    def text(self):
        return "\n".join(i.text() for i in self.ins) + "\n"

    def count(self):
        return sum(1 for i in self.ins if i.kind not in ('label', 'raw'))
```

```python
import struct
from asmgen import Gen, Reg, Alloc

S = 2048
M = 512
H = 32
D = 128
F = 1376
KA_X, KA_CKV, KA_WQ, KA_WUK, KA_WUV, KA_WO, KA_BX, KA_W1, KA_B1, KA_W2, KA_B2, KA_OUT, KA_DBG, KA_WS = \
    [8 * i for i in range(14)]

MB = 1 << 20
QF_OFF = 0
KF_OFF = 16 * MB
VF_OFF = 32 * MB
CF_OFF = 48 * MB
HF_OFF = 64 * MB
HF_BYTES = 64 * 86 * 1024
XN_OFF = HF_OFF + HF_BYTES
CK_OFF = XN_OFF + S * M * 2
WS_USED = CK_OFF + S * M * 2
WS_BYTES = 268435456
SRD_FLAGS = 0x00020000


def f32bits(x):
    return struct.unpack("<I", struct.pack("<f", x))[0]


def kernel_text(name, g, vgprs, sgprs):
    assert vgprs <= 256 and sgprs <= 102
    nv = (vgprs + 7) // 8 * 8
    acc = (nv + 3) // 4 * 4
    head = f""".text
.globl {name}
.p2align 8
.type {name},@function
{name}:
"""
    tail = f""".section .rodata,"a"
.p2align 6
.amdhsa_kernel {name}
  .amdhsa_next_free_vgpr {nv}
  .amdhsa_next_free_sgpr {sgprs}
  .amdhsa_accum_offset {acc}
  .amdhsa_group_segment_fixed_size 0
  .amdhsa_kernarg_size 112
  .amdhsa_user_sgpr_count 2
  .amdhsa_user_sgpr_kernarg_segment_ptr 1
  .amdhsa_system_sgpr_workgroup_id_x 1
.end_amdhsa_kernel
"""
    return head + g.text() + tail


def make_srd(g, srd, lo, hi, nbytes):
    g.I('s_mov_b32', srd[0], lo)
    g.I('s_mov_b32', srd[1], hi)
    g.I('s_mov_b32', srd[2], hex(nbytes))
    g.I('s_mov_b32', srd[3], hex(SRD_FLAGS))
```

```python
from common import *

ATTN_NAME = "attn_kernel"
ATTN_WGS = 256
ML_LDS = 131072
ATTN_LDS = ML_LDS + 4096
FD = 4
SCALE_LOG2E = (128 ** -0.5) * 1.4426950408889634


def kslot(g_, p):
    return (2 * g_ + p) * 16384


def vslot(g_, p):
    return 65536 + (2 * g_ + p) * 16384


def gen_attn():
    g = Gen()
    v = Alloc('v', 1, 256)
    s = Alloc('s', 3, 102)
    L_end = "attn_end"
    g.I('s_cmp_ge_u32', 's2', ATTN_WGS)
    g.I('s_cbranch_scc1', L_end)
    pWS = s(2)
    g.I('s_load_dwordx2', pWS, 's[0:1]', KA_WS)

    sW = s(); sWq = s(); sGrp = s(); sHead = s(); sPair = s(); sTmp = s(); sTmp2 = s()
    vT = v(); vLane = v()
    g.I('v_lshrrev_b32', vT, 6, 'v0')
    g.I('v_and_b32', vLane, 63, 'v0')
    g.I('v_readfirstlane_b32', sW, vT)
    g.I('s_and_b32', sWq, sW, 3)
    g.I('s_lshr_b32', sGrp, sW, 2)
    g.I('s_lshr_b32', sTmp, 's2', 3)
    g.I('s_and_b32', sPair, sTmp, 7)
    g.I('s_lshr_b32', sTmp, sTmp, 3)
    g.I('s_and_b32', sHead, 's2', 7)
    g.I('s_lshl_b32', sHead, sHead, 2)
    g.I('s_add_u32', sHead, sHead, sTmp)
    g.I('s_waitcnt', 'lgkmcnt(0)')
    g.lds_q = []
    srd = s(4)
    make_srd(g, srd, pWS[0], pWS[1], WS_BYTES)

    Q = v(32); O = v(64); Sb = v(64); P = v(16)
    ring = [v(4) for _ in range(FD)]
    vML = v(2); vM = vML[0]; vL = vML[1]
    vAlpha = v(); vNmc = v(); vMnew = v()
    ttb = v(4); tt = [ttb[k] for k in range(4)]
    vNegInf = v(); vQrel = v()
    vLane16 = v(); vKaddr = [v(), v()]; vVaddr = [v(), v()]; vXaddr = v()
    Sreg = [Sb[0:32], Sb[32:64]]
    sC = s(); sNegC = s(); sNegBig = s()
    sBlk = s(); sI = s(); sRem = s(); sQoff = s(); sQoff2 = s()
    sDmaG = s(); sDmaG2 = s(); sDmaRem = s(); sDmaL = [s(), s()]; sDmaL4 = s()
    sHeadK = s(); sHeadV = s(); sCtx = s(); sCtx2 = s()
    sMask = [s(2) for _ in range(4)]

    g.I('s_mov_b32', sC, hex(f32bits(SCALE_LOG2E)))
    g.I('s_mov_b32', sNegC, hex(f32bits(-SCALE_LOG2E)))
    g.I('s_mov_b32', sNegBig, hex(f32bits(-1e30)))
    g.I('v_mov_b32', vNegInf, '0xff800000')
    g.I('v_lshlrev_b32', vLane16, 4, vLane)
    for p in range(2):
        g.I('s_lshl_b32', sTmp, sGrp, 15)
        g.I('s_add_u32', sTmp, sTmp, kslot(0, p))
        g.I('v_add_u32', vKaddr[p], sTmp, vLane16)
        g.I('s_add_u32', sTmp, sTmp, 65536)
        g.I('v_add_u32', vVaddr[p], sTmp, vLane16)
    g.I('s_lshl_b32', sTmp, sWq, 14)
    g.I('v_add_u32', vXaddr, sTmp, vLane16)
    g.I('v_and_b32', vQrel, 31, vLane)
    g.I('s_lshl_b32', sTmp, sWq, 5)
    g.I('s_lshl_b32', sTmp2, sGrp, 6)
    g.I('s_sub_u32', sTmp, sTmp, sTmp2)
    g.I('v_add_u32', vQrel, sTmp, vQrel)
    g.I('v_lshrrev_b32', vT, 5, vLane)
    g.I('v_lshlrev_b32', vT, 2, vT)
    g.I('v_sub_u32', vQrel, vQrel, vT)
    g.I('s_lshl_b32', sTmp, sHead, 19)
    g.I('s_add_u32', sHeadK, sTmp, hex(KF_OFF))
    g.I('s_add_u32', sHeadV, sTmp, hex(VF_OFF))
    g.I('s_mov_b32', sBlk, 0)

    def issue_frag(idx, base, off, tag):
        g.ds_read('ds_read_b128', ring[idx % FD], base, offset=off, tag=tag)

    def make_steps(kind, p_rd):
        steps = []
        if kind == 'pv':
            for m in range(4):
                for b in range(4):
                    def mf(fr, m=m, b=b):
                        d = O[16 * b:16 * b + 16]
                        g.I('v_mfma_f32_32x32x16_bf16', d, fr, P[4 * m:4 * m + 4], d)
                    steps.append(((vVaddr[p_rd], m * 4096 + b * 1024), mf))
        else:
            for st in range(8):
                for u in range(2):
                    def mf(fr, st=st, u=u, Sd=kind[1]):
                        d = Sd[16 * u:16 * u + 16]
                        g.I('v_mfma_f32_32x32x16_bf16', d, fr, Q[4 * st:4 * st + 4], 0 if st == 0 else d)
                    steps.append(((vKaddr[p_rd], u * 8192 + st * 1024), mf))
        return steps

    def run_stream(steps, fillers, lead=10):
        n = len(steps)
        nf = sum(1 for f in fillers if not isinstance(f, tuple))
        fi = 0
        emitted_f = 0

        def emit_fill(upto):
            nonlocal fi, emitted_f
            while fi < len(fillers) and emitted_f < upto:
                f = fillers[fi]
                if isinstance(f, tuple):
                    if cur_step[0] < f[1]:
                        return
                    fi += 1
                    continue
                f(); fi += 1; emitted_f += 1

        cur_step = [0]
        for k in range(min(FD - 1, n)):
            (base, off), _ = steps[k]
            issue_frag(k, base, off, ('fr', k))
        emit_fill(lead)
        for k in range(n):
            if k + FD - 1 < n:
                (base, off), _ = steps[k + FD - 1]
                issue_frag(k + FD - 1, base, off, ('fr', k + FD - 1))
            g.wait_lds(('fr', k))
            steps[k][1](ring[k % FD])
            cur_step[0] = k + 1
            emit_fill(lead + (nf - lead) * (k + 1) // n if nf > lead else nf)
        emit_fill(10 ** 9)
        assert fi == len(fillers), (fi, len(fillers))

    def softmax_fill(Sc, masked, n_pv_steps):
        F_ = []
        A = lambda fn: F_.append(fn)
        if masked:
            for r0 in range(0, 32, 4):
                for k in range(4):
                    r = r0 + k
                    const = 32 * (r // 16) + 8 * ((r % 16) // 4) + (r % 4)
                    A(lambda r=r, k=k, const=const: g.I('v_cmp_le_i32', sMask[k], const, vQrel))
                for k in range(4):
                    r = r0 + k
                    A(lambda r=r, k=k: g.I('v_cndmask_b32', Sc[r], vNegInf, Sc[r], sMask[k]))
        for c in range(4):
            A(lambda c=c: g.I('v_max3_f32', tt[c], Sc[8 * c], Sc[8 * c + 1], Sc[8 * c + 2]))
        for c in range(4):
            A(lambda c=c: g.I('v_max3_f32', tt[c], tt[c], Sc[8 * c + 3], Sc[8 * c + 4]))
        for c in range(4):
            A(lambda c=c: g.I('v_max3_f32', tt[c], tt[c], Sc[8 * c + 5], Sc[8 * c + 6]))
        for c in range(4):
            A(lambda c=c: g.I('v_max_f32', tt[c], tt[c], Sc[8 * c + 7]))
        A(lambda: g.I('v_max3_f32', tt[0], tt[0], tt[1], tt[2]))
        A(lambda: g.I('v_max_f32', tt[0], tt[0], tt[3]))
        A(lambda: g.I('v_mov_b32', tt[1], tt[0]))
        A(lambda: g.I('v_permlane32_swap_b32', tt[0], tt[1]))
        A(lambda: g.I('v_max3_f32', vMnew, tt[0], tt[1], vM))
        A(lambda: g.I('v_max_f32', vMnew, sNegBig, vMnew))
        A(lambda: g.I('v_sub_f32', vAlpha, vM, vMnew))
        A(lambda: g.I('v_mul_f32', vNmc, sNegC, vMnew))
        A(lambda: g.I('v_mul_f32', vAlpha, sC, vAlpha))
        A(lambda: g.I('v_mov_b32', vM, vMnew))
        A(lambda: g.I('v_exp_f32', vAlpha, vAlpha))
        for r0 in range(0, 32, 4):
            for k in range(4):
                A(lambda r=r0 + k: g.I('v_fma_f32', Sc[r], Sc[r], sC, vNmc))
            for k in range(4):
                A(lambda r=r0 + k: g.I('v_exp_f32', Sc[r], Sc[r]))
        for c in range(4):
            A(lambda c=c: g.I('v_add_f32', tt[c], Sc[8 * c], Sc[8 * c + 1]))
        for k in range(2, 8):
            for c in range(4):
                A(lambda c=c, k=k: g.I('v_add_f32', tt[c], tt[c], Sc[8 * c + k]))
        A(lambda: g.I('v_add_f32', tt[0], tt[0], tt[1]))
        A(lambda: g.I('v_add_f32', tt[2], tt[2], tt[3]))
        A(lambda: g.I('v_add_f32', tt[0], tt[0], tt[2]))
        A(lambda: g.I('v_fma_f32', vL, vL, vAlpha, tt[0]))
        F_.append(('after', n_pv_steps))
        for k in range(16):
            A(lambda k=k: g.I('v_cvt_pk_bf16_f32', P[k], Sc[2 * k], Sc[2 * k + 1]))
        for r in range(64):
            A(lambda r=r: g.I('v_mul_f32', O[r], vAlpha, O[r]))
        return F_

    def dma_block(p):
        Ls = g.newlabel("attn_nodma")
        g.I('s_cmp_eq_u32', sDmaRem, 0)
        g.I('s_cbranch_scc1', Ls)
        g.I('s_sub_u32', sDmaRem, sDmaRem, 1)
        g.I('s_mov_b32', 'm0', sDmaL[p])
        g.I('s_add_u32', sDmaG2, sDmaG, 4096)
        g.I('s_add_u32', sDmaL4, sDmaL[p], 4096)
        for q in range(4):
            g.buf_load_lds(vLane16, srd, sDmaG, offset=1024 * q)
        g.I('s_mov_b32', 'm0', sDmaL4)
        for q in range(4):
            g.buf_load_lds(vLane16, srd, sDmaG2, offset=1024 * q)
        g.I('s_add_u32', sDmaG, sDmaG, 32768)
        g.label(Ls)
        g.I('s_nop', 1)

    def emit_round(p, has_pv, has_qk, masked):
        g.I('s_waitcnt', 'vmcnt(0)')
        g.I('s_barrier')
        dma_block(p)
        steps = []
        if has_pv:
            steps += make_steps('pv', 1 - p)
        npv = len(steps)
        if has_qk:
            steps += make_steps(('qk', Sreg[1 - p]), 1 - p)
        fill = softmax_fill(Sreg[p], masked, npv)
        if steps:
            run_stream(steps, fill)
        else:
            for f in fill:
                if not isinstance(f, tuple):
                    f()

    def emit_tail(p):
        g.I('s_waitcnt', 'vmcnt(0)')
        g.I('s_barrier')
        run_stream(make_steps('pv', p), [])

    L_blk = "attn_blk"
    g.label(L_blk)
    g.I('s_sub_u32', sTmp, 15, sPair)
    g.I('s_cmp_eq_u32', sBlk, 0)
    g.I('s_cselect_b32', sI, sTmp, sPair)
    g.I('v_mov_b32', vM, vNegInf)
    g.I('v_mov_b32', vL, 0)
    for r in range(64):
        g.I('v_mov_b32', O[r], 0)
    g.I('s_lshl_b32', sTmp, sI, 2)
    g.I('s_add_u32', sTmp, sTmp, sWq)
    g.I('s_lshl_b32', sQoff, sHead, 6)
    g.I('s_add_u32', sQoff, sQoff, sTmp)
    g.I('s_lshl_b32', sQoff, sQoff, 13)
    if QF_OFF:
        g.I('s_add_u32', sQoff, sQoff, hex(QF_OFF))
    g.I('s_add_u32', sQoff2, sQoff, 4096)
    g.I('s_lshl_b32', sCtx, sTmp, 18)
    g.I('s_lshl_b32', sTmp2, sHead, 13)
    g.I('s_add_u32', sCtx, sCtx, sTmp2)
    g.I('s_add_u32', sCtx, sCtx, hex(CF_OFF))
    g.I('s_add_u32', sCtx2, sCtx, 4096)
    g.vm_q = []
    for st in range(8):
        g.buf_load('dwordx4', Q[4 * st:4 * st + 4], vLane16, srd, sQoff if st < 4 else sQoff2,
                   offset=1024 * (st % 4), tag='q')
    g.I('s_lshl_b32', sTmp, sGrp, 14)
    g.I('s_add_u32', sTmp, sTmp, sHeadK)
    g.I('s_lshl_b32', sTmp2, sWq, 12)
    g.I('s_add_u32', sTmp, sTmp, sTmp2)
    g.I('s_lshl_b32', sDmaL4, sGrp, 15)
    g.I('s_add_u32', sDmaL4, sDmaL4, sTmp2)
    g.I('s_mov_b32', 'm0', sDmaL4)
    for q in range(4):
        g.buf_load_lds(vLane16, srd, sTmp, offset=1024 * q, tag='k0')
    g.I('s_add_u32', sTmp, sTmp, 32768)
    g.I('s_add_u32', sDmaL4, sDmaL4, 16384)
    g.I('s_mov_b32', 'm0', sDmaL4)
    for q in range(4):
        g.buf_load_lds(vLane16, srd, sTmp, offset=1024 * q, tag='k1')
    g.I('s_bfe_u32', sTmp, sW, '0x10001')
    g.I('s_and_b32', sTmp2, sW, 1)
    g.I('s_lshl_b32', sTmp2, sTmp2, 13)
    g.I('s_lshl_b32', sDmaG, sTmp, 14)
    g.I('s_add_u32', sDmaG, sDmaG, sTmp2)
    g.I('s_lshl_b32', sDmaL[0], sTmp, 15)
    g.I('s_add_u32', sDmaL[0], sDmaL[0], sTmp2)
    g.I('s_cmp_eq_u32', sGrp, 0)
    g.I('s_cselect_b32', sTmp, sHeadK, sHeadV)
    g.I('s_add_u32', sDmaG, sDmaG, sTmp)
    g.I('s_cmp_eq_u32', sGrp, 0)
    g.I('s_cselect_b32', sTmp, 65536, 0)
    g.I('s_add_u32', sDmaG, sDmaG, sTmp)
    g.I('s_cmp_eq_u32', sGrp, 0)
    g.I('s_cselect_b32', sTmp, 0, 65536)
    g.I('s_add_u32', sDmaL[0], sDmaL[0], sTmp)
    g.I('s_add_u32', sDmaL[1], sDmaL[0], 16384)
    g.I('s_sub_u32', sTmp, sI, 1)
    g.I('s_cmp_eq_u32', sI, 0)
    g.I('s_cselect_b32', sTmp, 0, sTmp)
    g.I('s_add_u32', sTmp2, sI, 1)
    g.I('s_cmp_eq_u32', sGrp, 0)
    g.I('s_cselect_b32', sDmaRem, sTmp, sTmp2)
    g.wait_vm('k0')
    g.I('s_barrier')
    run_stream(make_steps(('qk', Sreg[0]), 0), [])

    L_single = "attn_single"; L_loop = "attn_loop"; L_last0 = "attn_last0"; L_last1 = "attn_last1"
    L_merge = "attn_merge"
    g.I('s_cmp_eq_u32', sI, 0)
    g.I('s_cbranch_scc1', L_single)
    emit_round(0, False, True, False)
    g.I('s_mov_b32', sRem, 1)
    g.label(L_loop)
    g.I('s_cmp_eq_u32', sRem, sI)
    g.I('s_cbranch_scc1', L_last1)
    emit_round(1, True, True, False)
    g.I('s_add_u32', sRem, sRem, 1)
    g.I('s_cmp_eq_u32', sRem, sI)
    g.I('s_cbranch_scc1', L_last0)
    emit_round(0, True, True, False)
    g.I('s_add_u32', sRem, sRem, 1)
    g.I('s_branch', L_loop)
    g.label(L_last1)
    emit_round(1, True, False, True)
    emit_tail(1)
    g.I('s_branch', L_merge)
    g.label(L_last0)
    emit_round(0, True, False, True)
    emit_tail(0)
    g.I('s_branch', L_merge)
    g.label(L_single)
    emit_round(0, False, False, True)
    emit_tail(0)

    g.label(L_merge)
    L_g0 = "attn_g0"; L_next = "attn_next"
    g.I('s_cmp_eq_u32', sGrp, 0)
    g.I('s_cbranch_scc1', L_g0)
    for k in range(16):
        g.ds_write('ds_write_b128', vXaddr, O[4 * k:4 * k + 4], offset=1024 * k)
    g.I('s_lshl_b32', sTmp, sWq, 9)
    g.I('s_add_u32', sTmp, sTmp, ML_LDS)
    g.I('v_lshlrev_b32', vT, 3, vLane)
    g.I('v_add_u32', vT, sTmp, vT)
    g.ds_write('ds_write_b64', vT, vML)
    g.wait_lds_all()
    g.I('s_barrier')
    g.I('s_barrier')
    g.I('s_branch', L_next)
    g.label(L_g0)
    g.I('s_barrier')
    g.lds_q = []
    for k in range(16):
        g.ds_read('ds_read_b128', Sb[4 * k:4 * k + 4], vXaddr, offset=1024 * k, tag=('o1', k))
    g.I('s_lshl_b32', sTmp, sWq, 9)
    g.I('s_add_u32', sTmp, sTmp, ML_LDS)
    g.I('v_lshlrev_b32', vT, 3, vLane)
    g.I('v_add_u32', vT, sTmp, vT)
    ml1 = ttb[0:2]
    g.ds_read('ds_read_b64', ml1, vT, tag='ml')
    g.wait_lds_all()
    g.I('s_barrier')
    g.I('v_max_f32', vMnew, vM, ml1[0])
    g.I('v_sub_f32', vAlpha, vM, vMnew)
    g.I('v_sub_f32', vNmc, ml1[0], vMnew)
    g.I('v_mul_f32', vAlpha, sC, vAlpha)
    g.I('v_mul_f32', vNmc, sC, vNmc)
    g.I('v_exp_f32', vAlpha, vAlpha)
    g.I('v_exp_f32', vNmc, vNmc)
    g.I('v_mul_f32', vL, vL, vAlpha)
    g.I('v_fmac_f32', vL, ml1[1], vNmc)
    g.I('v_mov_b32', tt[2], vL)
    g.I('v_permlane32_swap_b32', vL, tt[2])
    g.I('v_add_f32', vL, vL, tt[2])
    g.I('v_rcp_f32', vL, vL)
    g.I('v_mul_f32', vAlpha, vAlpha, vL)
    g.I('v_mul_f32', vNmc, vNmc, vL)
    for e in range(8):
        pk = P[4 * (e % 4):4 * (e % 4) + 4]
        for k in range(8):
            r = 8 * e + k
            g.I('v_mul_f32', O[r], O[r], vAlpha)
            g.I('v_fmac_f32', O[r], Sb[r], vNmc)
        for k in range(4):
            g.I('v_cvt_pk_bf16_f32', pk[k], O[8 * e + 2 * k], O[8 * e + 2 * k + 1])
        g.buf_store('dwordx4', pk, vLane16, srd, sCtx if e < 4 else sCtx2, offset=1024 * (e % 4))
    g.label(L_next)
    g.I('s_add_u32', sBlk, sBlk, 1)
    g.I('s_cmp_lt_u32', sBlk, 2)
    g.I('s_cbranch_scc1', L_blk)
    g.label(L_end)
    g.I('s_endpgm')
    probs = g.verify_edges()
    return g, v.hi, s.hi, probs
```

```python
from common import *

LN_WGS = 256
LN_NAME = "ln_kernel"


def rne_bf16(g, dst, src):
    g.I('v_cvt_pk_bf16_f32', dst, src, src)
    g.I('v_lshlrev_b32', dst, 16, dst)


def gen_ln():
    g = Gen()
    v = Alloc('v', 1, 256)
    s = Alloc('s', 3, 102)
    L_end = "ln_end"
    g.I('s_cmp_ge_u32', 's2', LN_WGS)
    g.I('s_cbranch_scc1', L_end)
    px = s(2); pws = s(2); pck = s(2)
    g.I('s_load_dwordx2', px, 's[0:1]', KA_X)
    g.I('s_load_dwordx2', pck, 's[0:1]', KA_CKV)
    g.I('s_load_dwordx2', pws, 's[0:1]', KA_WS)
    srdx = s(4); srdo = s(4); srdc = s(4)
    voff = v()
    t0 = v()
    g.I('v_and_b32', voff, 63, 'v0')
    g.I('v_lshlrev_b32', voff, 4, voff)
    g.I('v_lshrrev_b32', t0, 6, 'v0')
    g.I('v_lshlrev_b32', t0, 11, t0)
    g.I('v_add_u32', voff, voff, t0)
    sb = s()
    g.I('s_lshl_b32', sb, 's2', 13)
    g.I('s_waitcnt', 'lgkmcnt(0)')
    g.lds_q = []
    make_srd(g, srdx, px[0], px[1], S * M * 2)
    g.I('s_add_u32', srdo[0], pws[0], hex(XN_OFF))
    g.I('s_addc_u32', srdo[1], pws[1], 0)
    g.I('s_mov_b32', srdo[2], hex(2 * S * M * 2))
    g.I('s_mov_b32', srdo[3], hex(SRD_FLAGS))
    make_srd(g, srdc, pck[0], pck[1], S * M * 2)
    vdst = v(); t3 = v(); sdst = s()
    g.I('v_and_b32', t3, 63, 'v0')
    g.I('v_lshrrev_b32', vdst, 1, t3)
    g.I('v_lshlrev_b32', vdst, 10, vdst)
    g.I('v_and_b32', t3, 1, t3)
    g.I('v_lshlrev_b32', t3, 9, t3)
    g.I('v_add_u32', vdst, vdst, t3)
    g.I('v_lshrrev_b32', t3, 6, 'v0')
    g.I('v_lshlrev_b32', t3, 5, t3)
    g.I('v_add_u32', vdst, vdst, t3)
    g.I('s_and_b32', sdst, 's2', 3)
    g.I('s_lshl_b32', sdst, sdst, 7)
    g.I('v_add_u32', vdst, sdst, vdst)
    g.I('s_lshr_b32', sdst, 's2', 2)
    g.I('s_lshl_b32', sdst, sdst, 15)
    sdst2 = s()
    g.I('s_add_u32', sdst2, sdst, hex(S * M * 2))
    ck = [v(4) for _ in range(2)]
    for r in range(2):
        g.buf_load('dwordx4', ck[r], voff, srdc, sb, offset=1024 * r, tag=('ck', r))
    for r in range(2):
        g.wait_vm(('ck', r))
        g.buf_store('dwordx4', ck[r], vdst, srdo, sdst2, offset=16 * r)
    R = 2
    d = [v(4) for _ in range(R)]
    for r in range(R):
        g.buf_load('dwordx4', d[r], voff, srdx, sb, offset=1024 * r, tag=('x', r))
    f = [v(8) for _ in range(R)]
    acc = [v() for _ in range(R)]
    tmp = [v() for _ in range(R)]
    mean = [v() for _ in range(R)]
    for r in range(R):
        g.wait_vm(('x', r))
        for k in range(4):
            g.I('v_lshlrev_b32', f[r][2 * k], 16, d[r][k])
            g.I('v_and_b32', f[r][2 * k + 1], '0xffff0000', d[r][k])

    def tree_sum(dst, src, r):
        g.I('v_add_f32', tmp[r], src[0], src[1])
        g.I('v_add_f32', dst, src[2], src[3])
        g.I('v_add_f32', tmp[r], tmp[r], dst)
        g.I('v_add_f32', dst, src[4], src[5])
        g.I('v_add_f32', tmp[r], tmp[r], dst)
        g.I('v_add_f32', dst, src[6], src[7])
        g.I('v_add_f32', dst, tmp[r], dst)

    def reduce64(regs):
        for x in (1, 2, 4, 8, 16):
            for r in range(R):
                g.I('ds_swizzle_b32', tmp[r], regs[r], mods=f"offset:{hex((x << 10) | 0x1F)}", tag=('sw', r))
            for r in range(R):
                g.wait_lds(('sw', r))
                g.I('v_add_f32', regs[r], regs[r], tmp[r])
        for r in range(R):
            g.I('v_mov_b32', tmp[r], regs[r])
        for r in range(R):
            g.I('v_permlane32_swap_b32', regs[r], tmp[r])
        for r in range(R):
            g.I('v_add_f32', regs[r], regs[r], tmp[r])

    for r in range(R):
        tree_sum(acc[r], [f[r][k] for k in range(8)], r)
    reduce64(acc)
    for r in range(R):
        g.I('v_mul_f32', mean[r], '0x3b000000', acc[r])
    dev = [v(8) for _ in range(R)]
    for r in range(R):
        for k in range(8):
            g.I('v_sub_f32', dev[r][k], f[r][k], mean[r])
        g.I('v_mul_f32', acc[r], dev[r][0], dev[r][0])
        for k in range(1, 8):
            g.I('v_fmac_f32', acc[r], dev[r][k], dev[r][k])
    reduce64(acc)
    rs = [v() for _ in range(R)]
    for r in range(R):
        g.I('v_mul_f32', acc[r], '0x3b000000', acc[r])
        rne_bf16(g, acc[r], acc[r])
        g.I('v_add_f32', acc[r], '0x3727c5ac', acc[r])
        rne_bf16(g, acc[r], acc[r])
        g.I('v_sqrt_f32', acc[r], acc[r])
        rne_bf16(g, acc[r], acc[r])
        g.I('v_rcp_f32', rs[r], acc[r])
        rne_bf16(g, mean[r], mean[r])
    for r in range(R):
        for k in range(4):
            g.I('v_sub_f32', f[r][2 * k], f[r][2 * k], mean[r])
            g.I('v_sub_f32', f[r][2 * k + 1], f[r][2 * k + 1], mean[r])
            g.I('v_cvt_pk_bf16_f32', d[r][k], f[r][2 * k], f[r][2 * k + 1])
        for k in range(4):
            g.I('v_lshlrev_b32', f[r][2 * k], 16, d[r][k])
            g.I('v_and_b32', f[r][2 * k + 1], '0xffff0000', d[r][k])
        for k in range(8):
            g.I('v_mul_f32', f[r][k], f[r][k], rs[r])
        for k in range(4):
            g.I('v_cvt_pk_bf16_f32', d[r][k], f[r][2 * k], f[r][2 * k + 1])
        g.buf_store('dwordx4', d[r], vdst, srdo, sdst, offset=16 * r)
    g.label(L_end)
    g.I('s_endpgm')
    probs = g.verify_edges()
    assert not probs, probs
    return g, v.hi, s.hi
```

```python
from common import *

OUT_NAME = "out_kernel"
OUT_WGS = 256
OUT_THREADS = 256
STG = 32768
NRING = 4
OUT_LDS = NRING * STG
NST = 43
OOB = 0x40000000
PD = 2


def gen_out():
    g = Gen()
    v = Alloc('v', 1, 256)
    s = Alloc('s', 3, 102)
    L_end = "out_end"
    g.I('s_cmp_ge_u32', 's2', OUT_WGS)
    g.I('s_cbranch_scc1', L_end)
    pX = s(2); pWo = s(2); pW2 = s(2); pB2 = s(2); pOut = s(2); pWS = s(2)
    g.I('s_load_dwordx2', pX, 's[0:1]', KA_X)
    g.I('s_load_dwordx2', pWo, 's[0:1]', KA_WO)
    g.I('s_load_dwordx2', pW2, 's[0:1]', KA_W2)
    g.I('s_load_dwordx2', pB2, 's[0:1]', KA_B2)
    g.I('s_load_dwordx2', pOut, 's[0:1]', KA_OUT)
    g.I('s_load_dwordx2', pWS, 's[0:1]', KA_WS)
    sW = s(); sWt = s(); sWf = s(); sTb = s(); sFb = s(); sTmp = s(); sTmp2 = s()
    vT = v(); vLane = v(); vH = v(); vC = v()
    g.I('v_lshrrev_b32', vT, 6, 'v0')
    g.I('v_and_b32', vLane, 63, 'v0')
    g.I('v_readfirstlane_b32', sW, vT)
    g.I('v_lshrrev_b32', vH, 5, vLane)
    g.I('v_and_b32', vC, 31, vLane)
    g.I('s_and_b32', sWt, sW, 1)
    g.I('s_lshr_b32', sWf, sW, 1)
    g.I('s_lshr_b32', sTmp, 's2', 3)
    g.I('s_and_b32', sFb, sTmp, 7)
    g.I('s_lshr_b32', sTmp, sTmp, 3)
    g.I('s_lshl_b32', sTmp, sTmp, 3)
    g.I('s_and_b32', sTb, 's2', 7)
    g.I('s_add_u32', sTb, sTb, sTmp)
    g.I('s_waitcnt', 'lgkmcnt(0)')
    g.lds_q = []
    srdX = s(4); srdW = s(4); srdB = s(4); srdO = s(4); srdA = s(4)
    make_srd(g, srdX, pX[0], pX[1], S * M * 2)
    make_srd(g, srdW, pWo[0], pWo[1], 4096 * M * 2)
    make_srd(g, srdB, pB2[0], pB2[1], M * 2)
    make_srd(g, srdO, pOut[0], pOut[1], S * M * 2)
    make_srd(g, srdA, pWS[0], pWS[1], WS_BYTES)

    vEo = v(); vEb = v(); sEo = s(); sEb = s()
    g.I('v_lshlrev_b32', vEo, 10, vC)
    g.I('v_lshlrev_b32', vT, 3, vH)
    g.I('v_add_u32', vEo, vEo, vT)
    g.I('v_mov_b32', vEb, vT)
    g.I('s_lshl_b32', sEb, sFb, 6)
    g.I('s_lshl_b32', sTmp, sWf, 5)
    g.I('s_add_u32', sEb, sEb, sTmp)
    g.I('s_lshl_b32', sEb, sEb, 1)
    g.I('s_lshl_b32', sEo, sTb, 6)
    g.I('s_lshl_b32', sTmp, sWt, 5)
    g.I('s_add_u32', sEo, sEo, sTmp)
    g.I('s_lshl_b32', sEo, sEo, 10)
    g.I('s_add_u32', sEo, sEo, sEb)
    xr = v(8); br = v(8)
    for q in range(4):
        g.buf_load('dwordx2', xr[2 * q:2 * q + 2], vEo, srdX, sEo, offset=16 * q, tag='xr')
    for q in range(4):
        g.buf_load('dwordx2', br[2 * q:2 * q + 2], vEb, srdB, sEb, offset=16 * q, tag='br')

    vDma = v(); t1 = v()
    sActOff = s(); sWoff = s(); sSel = s(); sSel2 = s(); sM0 = s(); sRoleL = s(); sDmaSt = s(); sSlotD = s(); sOOB = s()
    sWq = [s() for _ in range(8)]
    L_wrole = "out_wrole"; L_roledone = "out_roledone"
    g.I('s_mov_b32', sOOB, hex(OOB))
    g.I('s_cmp_ge_u32', sW, 2)
    g.I('s_cbranch_scc1', L_wrole)
    g.I('v_lshlrev_b32', vDma, 4, vLane)
    g.I('s_lshl_b32', sActOff, sTb, 1)
    g.I('s_add_u32', sActOff, sActOff, sW)
    g.I('s_mul_i32', sTmp2, sActOff, 86 * 1024)
    g.I('s_add_u32', sTmp2, sTmp2, hex(HF_OFF))
    g.I('s_lshl_b32', sActOff, sActOff, 18)
    g.I('s_add_u32', sActOff, sActOff, hex(CF_OFF))
    g.I('s_lshl_b32', sRoleL, sW, 13)
    g.I('s_branch', L_roledone)
    g.label(L_wrole)
    g.I('v_lshrrev_b32', vDma, 2, vLane)
    g.I('v_lshlrev_b32', vDma, 10, vDma)
    g.I('v_and_b32', t1, 3, vLane)
    g.I('v_lshlrev_b32', t1, 4, t1)
    g.I('v_add_u32', vDma, vDma, t1)
    g.I('s_sub_u32', sTmp, sW, 2)
    g.I('s_lshl_b32', sWoff, sFb, 6)
    g.I('s_lshl_b32', sTmp2, sTmp, 5)
    g.I('s_add_u32', sWoff, sWoff, sTmp2)
    g.I('s_lshl_b32', sWoff, sWoff, 1)
    g.I('s_mov_b32', sTmp2, sWoff)
    g.I('s_lshl_b32', sRoleL, sTmp, 13)
    g.I('s_add_u32', sRoleL, sRoleL, 16384)
    g.label(L_roledone)
    sPh2 = s()
    g.I('s_mov_b32', sPh2, sTmp2)
    g.I('s_mov_b32', sDmaSt, 0)
    g.I('s_mov_b32', sSlotD, 0)

    def dma_stage():
        La = g.newlabel("out_dma_w"); Lb = g.newlabel("out_dma_done"); Lsw = g.newlabel("out_nosw")
        g.I('s_cmp_lg_u32', sDmaSt, 32)
        g.I('s_cbranch_scc1', Lsw)
        g.I('s_mov_b32', sActOff, sPh2)
        g.I('s_mov_b32', sWoff, sPh2)
        g.I('s_mov_b32', srdW[0], pW2[0])
        g.I('s_mov_b32', srdW[1], pW2[1])
        g.I('s_mov_b32', srdW[2], hex(F * M * 2))
        g.label(Lsw)
        g.I('s_add_u32', sM0, sSlotD, sRoleL)
        g.I('s_cmp_ge_u32', sW, 2)
        g.I('s_cbranch_scc1', La)
        g.I('s_cmp_lt_u32', sDmaSt, NST)
        g.I('s_cselect_b32', sSel, sActOff, sOOB)
        g.I('s_mov_b32', 'm0', sM0)
        g.I('s_add_u32', sSel2, sSel, 4096)
        for q in range(4):
            g.buf_load_lds(vDma, srdA, sSel, offset=1024 * q)
        g.I('s_add_u32', sM0, sM0, 4096)
        g.I('s_mov_b32', 'm0', sM0)
        for q in range(4):
            g.buf_load_lds(vDma, srdA, sSel2, offset=1024 * q)
        g.I('s_add_u32', sActOff, sActOff, 8192)
        g.I('s_branch', Lb)
        g.label(La)
        g.I('s_cmp_lt_u32', sDmaSt, NST)
        g.I('s_cselect_b32', sSel, sWoff, sOOB)
        g.I('s_mov_b32', 'm0', sM0)
        for q in range(1, 8):
            g.I('s_add_u32', sWq[q], sSel, q * 16384 - (q % 4) * 1024)
        for q in range(4):
            g.buf_load_lds(vDma, srdW, sSel if q == 0 else sWq[q], offset=1024 * q)
        g.I('s_add_u32', sM0, sM0, 4096)
        g.I('s_mov_b32', 'm0', sM0)
        for q in range(4, 8):
            g.buf_load_lds(vDma, srdW, sWq[q], offset=1024 * (q % 4))
        g.I('s_add_u32', sWoff, sWoff, 128 * 1024)
        g.label(Lb)
        g.I('s_add_u32', sDmaSt, sDmaSt, 1)
        g.I('s_add_u32', sSlotD, sSlotD, STG)
        g.I('s_and_b32', sSlotD, sSlotD, NRING * STG - 1)

    vLP = v(); vAp = v(); vWaddr = v(); vAaddr = v(); t2 = v()
    g.I('v_and_b32', t1, 15, vLane)
    g.I('v_lshrrev_b32', t1, 2, t1)
    g.I('v_lshlrev_b32', t2, 2, vH)
    g.I('v_add_u32', t1, t1, t2)
    g.I('v_lshlrev_b32', vLP, 6, t1)
    g.I('v_lshrrev_b32', t1, 4, vLane)
    g.I('v_and_b32', t1, 1, t1)
    g.I('v_lshlrev_b32', t1, 5, t1)
    g.I('v_add_u32', vLP, vLP, t1)
    g.I('v_and_b32', t1, 3, vLane)
    g.I('v_lshlrev_b32', t1, 3, t1)
    g.I('v_add_u32', vLP, vLP, t1)
    g.I('s_lshl_b32', sTmp, sWf, 13)
    g.I('s_add_u32', sTmp, sTmp, 16384)
    g.I('v_add_u32', vLP, sTmp, vLP)
    g.I('v_lshlrev_b32', vAp, 4, vLane)
    g.I('s_lshl_b32', sTmp, sWt, 13)
    g.I('v_add_u32', vAp, sTmp, vAp)
    acc = v(16)
    wf_ = [v(4) for _ in range(PD + 1)]
    af_ = [v(4) for _ in range(PD + 1)]
    sSlotR = s(); sSt = s()
    g.vm_q = []
    for _ in range(3):
        dma_stage()
    g.I('s_mov_b32', sSlotR, 0)
    g.I('s_mov_b32', sSt, 0)
    for r in range(16):
        g.I('v_mov_b32', acc[r], 0)

    def issue(ks):
        w = wf_[ks % (PD + 1)]; a = af_[ks % (PD + 1)]
        g.ds_read('ds_read_b64_tr_b16', w[0:2], vWaddr, offset=1024 * ks, tag=('w', ks, 0))
        g.ds_read('ds_read_b64_tr_b16', w[2:4], vWaddr, offset=1024 * ks + 512, tag=('w', ks, 1))
        g.ds_read('ds_read_b128', a, vAaddr, offset=1024 * ks, tag=('a', ks))

    L_loop = "out_loop"
    g.label(L_loop)
    g.I('s_waitcnt', 'vmcnt(16)')
    g.I('s_barrier')
    g.I('v_add_u32', vWaddr, sSlotR, vLP)
    g.I('v_add_u32', vAaddr, sSlotR, vAp)
    for ks in range(PD):
        issue(ks)
    dma_stage()
    for ks in range(8):
        if ks + PD < 8:
            issue(ks + PD)
        g.wait_lds(('a', ks))
        g.I('v_mfma_f32_32x32x16_bf16', acc, wf_[ks % (PD + 1)], af_[ks % (PD + 1)], acc)
    g.I('s_add_u32', sSlotR, sSlotR, STG)
    g.I('s_and_b32', sSlotR, sSlotR, NRING * STG - 1)
    g.I('s_add_u32', sSt, sSt, 1)
    g.I('s_cmp_lt_u32', sSt, NST)
    g.I('s_cbranch_scc1', L_loop)

    g.I('s_nop', 15)
    g.I('s_waitcnt', 'vmcnt(24)')
    tf = v(8)
    pk = v(8)
    for q in range(4):
        for half in range(2):
            d = xr[2 * q + half]; b = br[2 * q + half]
            g.I('v_lshlrev_b32', tf[0], 16, d)
            g.I('v_and_b32', tf[1], '0xffff0000', d)
            g.I('v_lshlrev_b32', tf[2], 16, b)
            g.I('v_and_b32', tf[3], '0xffff0000', b)
            g.I('v_add_f32', tf[0], tf[0], tf[2])
            g.I('v_add_f32', tf[1], tf[1], tf[3])
            g.I('v_add_f32', acc[4 * q + 2 * half], acc[4 * q + 2 * half], tf[0])
            g.I('v_add_f32', acc[4 * q + 2 * half + 1], acc[4 * q + 2 * half + 1], tf[1])
        for half in range(2):
            g.I('v_cvt_pk_bf16_f32', pk[2 * q + half], acc[4 * q + 2 * half], acc[4 * q + 2 * half + 1])
        g.buf_store('dwordx2', pk[2 * q:2 * q + 2], vEo, srdO, sEo, offset=16 * q)
    g.label(L_end)
    g.I('s_endpgm')
    probs = g.verify_edges()
    assert not probs, probs
    return g, v.hi, s.hi
```

```python
import math
from common import *

PROJ_NAME = "proj_kernel"
PROJ_WGS = 256
RING = 4
SLOT = 32768
BIAS_LDS = RING * SLOT
PROJ_LDS = RING * SLOT + 1024
DEPTH = 8
OOB = 0x40000000

LOG2E = 1.4426950408889634
GELU_C1 = -2.0 * 0.7978845608028654 * LOG2E
GELU_C2 = GELU_C1 * 0.044715


STAMP = False
STAMP2 = False
STAMP_OFF = 76 * MB


def gen_proj():
    g = Gen()
    v = Alloc('v', 1, 256)
    s = Alloc('s', 3, 102)
    L_end = "proj_end"
    g.I('s_cmp_ge_u32', 's2', PROJ_WGS)
    g.I('s_cbranch_scc1', L_end)

    pA = s(8)
    pW1 = s(2); pB1 = s(2); pWS = s(2)
    g.I('s_load_dwordx8', pA, 's[0:1]', KA_CKV)
    g.I('s_load_dwordx4', Reg('s', pW1.base, 4), 's[0:1]', KA_W1) if pB1.base == pW1.base + 2 and pW1.base % 4 == 0 else (
        g.I('s_load_dwordx2', pW1, 's[0:1]', KA_W1), g.I('s_load_dwordx2', pB1, 's[0:1]', KA_B1))
    g.I('s_load_dwordx2', pWS, 's[0:1]', KA_WS)

    sW = s()
    vT = v(); vLane = v(); vH = v(); vC = v()
    g.I('v_lshrrev_b32', vT, 6, 'v0')
    g.I('v_and_b32', vLane, 63, 'v0')
    g.I('v_readfirstlane_b32', sW, vT)
    g.I('v_lshrrev_b32', vH, 5, vLane)
    g.I('v_and_b32', vC, 31, vLane)

    sTb = s(); sCh = s(); sTmp = s(); sTmp2 = s(); sType = s(); sCc = s(); sStart = s(); sCnt = s()
    g.I('s_lshr_b32', sTmp, 's2', 3)
    g.I('s_and_b32', sTb, sTmp, 7)
    g.I('s_lshr_b32', sTmp, sTmp, 3)
    g.I('s_lshl_b32', sTmp, sTmp, 3)
    g.I('s_and_b32', sCh, 's2', 7)
    g.I('s_add_u32', sCh, sCh, sTmp)
    g.I('s_mov_b32', sType, 0)
    g.I('s_mov_b32', sCc, sCh)
    for k in range(3):
        g.I('s_cmp_ge_u32', sCh, 9 * (k + 1))
        g.I('s_cselect_b32', sTmp, 1, 0)
        g.I('s_add_u32', sType, sType, sTmp)
        g.I('s_cselect_b32', sTmp, 9, 0) if False else None
    g.I('s_mul_i32', sTmp, sType, 9)
    g.I('s_sub_u32', sCc, sCh, sTmp)
    g.I('s_mul_i32', sStart, sCc, 14)
    g.I('s_min_u32', sTmp, sCc, 2)
    g.I('s_add_u32', sStart, sStart, sTmp)
    g.I('s_cmp_lt_u32', sCc, 2)
    g.I('s_cselect_b32', sCnt, 15, 14)
    g.I('s_mul_i32', sTmp, sCc, 9)
    g.I('s_sub_u32', sTmp2, sCc, 3)
    g.I('s_cmp_ge_u32', sCc, 3)
    g.I('s_cselect_b32', sTmp2, sTmp2, 0)
    g.I('s_sub_u32', sTmp, sTmp, sTmp2)
    g.I('s_cmp_ge_u32', sCc, 3)
    g.I('s_cselect_b32', sTmp2, 8, 9)
    g.I('s_cmp_eq_u32', sType, 3)
    g.I('s_cselect_b32', sStart, sTmp, sStart)
    g.I('s_cselect_b32', sCnt, sTmp2, sCnt)

    g.I('s_waitcnt', 'lgkmcnt(0)')
    g.lds_q = []

    srdX = s(4); srdW = s(4); srdO = s(4); srdB = s(4)
    sXsel = s()
    g.I('s_cmp_eq_u32', sType, 0)
    g.I('s_cselect_b32', sTmp, 1, 0)
    g.I('s_cmp_eq_u32', sType, 3)
    g.I('s_cselect_b32', sTmp2, 1, 0)
    g.I('s_or_b32', sTmp, sTmp, sTmp2)
    g.I('s_mov_b32', sXsel, hex(XN_OFF))
    g.I('s_cmp_eq_u32', sTmp, 1)
    g.I('s_cselect_b32', sXsel, sXsel, hex(CK_OFF))
    g.I('s_cmp_eq_u32', sType, 0)
    g.I('s_cselect_b32', srdW[0], pA[2], pA[4])
    g.I('s_cselect_b32', srdW[1], pA[3], pA[5])
    g.I('s_cmp_eq_u32', sType, 2)
    g.I('s_cselect_b32', srdW[0], pA[6], srdW[0])
    g.I('s_cselect_b32', srdW[1], pA[7], srdW[1])
    g.I('s_cmp_eq_u32', sType, 3)
    g.I('s_cselect_b32', srdW[0], pW1[0], srdW[0])
    g.I('s_cselect_b32', srdW[1], pW1[1], srdW[1])
    g.I('s_mov_b32', sTmp, hex(M * F * 2))
    g.I('s_cselect_b32', srdW[2], sTmp, hex(M * 4096 * 2))
    g.I('s_mov_b32', srdW[3], hex(SRD_FLAGS))
    make_srd(g, srdO, pWS[0], pWS[1], WS_BYTES)
    make_srd(g, srdB, pB1[0], pB1[1], F * 2)

    vXoff = v()
    t1 = v()
    g.I('v_lshlrev_b32', vXoff, 4, vLane)
    vLanePart = v()
    t2 = v()
    g.I('v_and_b32', t1, 15, vLane)
    g.I('v_lshrrev_b32', t1, 2, t1)
    g.I('v_lshlrev_b32', t2, 3, vH)
    g.I('v_add_u32', t1, t1, t2)
    g.I('v_lshlrev_b32', vLanePart, 6, t1)
    g.I('v_lshrrev_b32', t1, 4, vLane)
    g.I('v_and_b32', t1, 1, t1)
    g.I('v_lshlrev_b32', t1, 5, t1)
    g.I('v_add_u32', vLanePart, vLanePart, t1)
    g.I('v_and_b32', t1, 3, vLane)
    g.I('v_lshlrev_b32', t1, 3, t1)
    g.I('v_add_u32', vLanePart, vLanePart, t1)

    X = v(128)
    accA = v(16); accB = v(16)
    ring = [v(4) for _ in range(DEPTH)]
    pk = v(8)
    vTr = [v(), v()]
    vDma = v(); vOut = v()
    vBblk = v(4); vOnes = v(4); vBaddr = v(); vC1 = v()
    gt = [v() for _ in range(4)]

    sDmaCol = s(); sDmaRem = s(); sSlotDma = s(); sSlotRd = s(); sIter = s(); sNt = s(); sOutBase = s()
    sQ = [s() for _ in range(4)]
    sSel = s(); sM0 = s(); sW4096 = s(); sEpi = s(); sEpi2 = s(); sC2 = s(); sOOB = s()
    g.I('s_mov_b32', sOOB, hex(OOB))
    g.I('s_lshl_b32', sW4096, sW, 12)

    sStamp = s(2); sStampOff = s(); vStamp = v(); vStampA = v()
    if STAMP:
        g.I('s_lshl_b32', sStampOff, 's2', 8)
        g.I('s_add_u32', sStampOff, sStampOff, hex(STAMP_OFF))
        g.I('v_mov_b32', vStampA, 0)

    def stamp():
        if not STAMP:
            return
        Ls = g.newlabel("stamp")
        g.I('s_cmp_lg_u32', sW, 0)
        g.I('s_cbranch_scc1', Ls)
        g.I('s_memtime', sStamp)
        g.I('s_waitcnt', 'lgkmcnt(0)')
        g.I('v_mov_b32', vStamp, sStamp[0])
        g.I('buffer_store_dword', vStamp, vStampA, srdO, sStampOff, mods="offen")
        g.I('s_add_u32', sStampOff, sStampOff, 4)
        g.label(Ls)

    def body(kind):
        pitch = F * 2 if kind == 'f' else 4096 * 2
        Lloop = f"proj_{kind}_loop"; LendA = f"proj_{kind}_endA"; LendB = f"proj_{kind}_endB"
        g.I('v_lshrrev_b32', t1, 2, vLane)
        g.I('s_mov_b32', sTmp, pitch)
        g.I('v_mul_lo_u32', vDma, t1, sTmp)
        g.I('v_and_b32', t1, 3, vLane)
        g.I('v_lshlrev_b32', t1, 4, t1)
        g.I('v_add_u32', vDma, vDma, t1)
        g.I('s_lshl_b32', sTmp, sTb, 3)
        g.I('s_add_u32', sTmp, sTmp, sW)
        g.I('s_mul_i32', sTmp, sTmp, 88064 if kind == 'f' else 8192)
        g.I('v_lshlrev_b32', vOut, 4, vLane)
        g.I('v_add_u32', vOut, sTmp, vOut)
        g.I('s_mul_i32', sDmaCol, sW, 64 * pitch)
        g.I('s_lshl_b32', sTmp, sStart, 6)
        g.I('s_add_u32', sDmaCol, sDmaCol, sTmp)
        g.I('s_mov_b32', sDmaRem, sCnt)
        g.I('s_mov_b32', sSlotDma, 0)
        g.I('s_mov_b32', sSlotRd, 0)
        g.I('s_mov_b32', sNt, sStart)
        if kind == 'qk':
            g.I('s_cmp_eq_u32', sType, 0)
            g.I('s_cselect_b32', sOutBase, hex(QF_OFF) if QF_OFF else 0, hex(KF_OFF))
        elif kind == 'v':
            g.I('s_mov_b32', sOutBase, hex(VF_OFF))
        else:
            g.I('s_mov_b32', sOutBase, hex(HF_OFF))

        def dma_tile():
            g.I('s_cmp_gt_i32', sDmaRem, 0)
            g.I('s_cselect_b32', sSel, sDmaCol, sOOB)
            g.I('s_sub_u32', sDmaRem, sDmaRem, 1)
            g.I('s_add_u32', sM0, sSlotDma, sW4096)
            g.I('s_mov_b32', 'm0', sM0)
            for q in range(1, 4):
                g.I('s_add_u32', sQ[q], sSel, q * (16 * pitch - 1024))
            for q in range(4):
                g.buf_load_lds(vDma, srdW, sSel if q == 0 else sQ[q], offset=1024 * q, tag='dma')
            g.I('s_add_u32', sDmaCol, sDmaCol, 64)
            g.I('s_add_u32', sSlotDma, sSlotDma, SLOT)
            g.I('s_and_b32', sSlotDma, sSlotDma, RING * SLOT - 1)

        if kind == 'f':
            Lnb = g.newlabel("proj_nb")
            g.I('s_cmp_lg_u32', sW, 0)
            g.I('s_cbranch_scc1', Lnb)
            g.I('s_mov_b32', 'm0', BIAS_LDS)
            g.I('s_lshl_b32', sTmp, sStart, 6)
            g.I('v_lshlrev_b32', t1, 4, vLane)
            g.buf_load_lds(t1, srdB, sTmp, tag='bias')
            g.label(Lnb)
            for k in range(1, 4):
                g.I('v_mov_b32', vBblk[k], 0)
                g.I('v_mov_b32', vOnes[k], 0)
            g.I('v_cmp_gt_u32', 'vcc', 32, vLane)
            g.I('v_mov_b32', t1, 0)
            g.I('v_mov_b32', t2, '0x3f80')
            g.I('v_cndmask_b32', vOnes[0], t1, t2, 'vcc')
            g.I('v_lshlrev_b32', vBaddr, 1, vC)
            g.I('v_add_u32', vBaddr, BIAS_LDS, vBaddr)
            g.I('v_mov_b32', vC1, hex(f32bits(GELU_C1)))
            g.I('s_mov_b32', sC2, hex(f32bits(GELU_C2)))

        stamp()
        for _ in range(3):
            dma_tile()
        if STAMP2:
            g.wait_vm_all()
            stamp()
        g.I('s_lshl_b32', sTmp, sTb, 3)
        g.I('s_add_u32', sTmp, sTmp, sW)
        g.I('s_lshl_b32', sTmp, sTmp, 15)
        g.I('s_add_u32', sTmp, sTmp, sXsel)
        for k in range(32):
            if k % 4 == 0 and k:
                g.I('s_add_u32', sTmp, sTmp, 4096)
            g.buf_load('dwordx4', X[4 * k:4 * k + 4], vXoff, srdO, sTmp, offset=1024 * (k % 4), tag='x')
        if STAMP2:
            stamp()
        g.wait_vm_all()
        g.I('s_barrier')
        stamp()
        g.I('v_mov_b32', vTr[0], vLanePart)
        g.I('v_add_u32', vTr[1], SLOT, vLanePart)
        g.I('s_mov_b32', sSlotRd, SLOT)

        def issue_frag(f, base, tagp):
            r = ring[f % DEPTH]
            g.ds_read('ds_read_b64_tr_b16', r[0:2], base, offset=1024 * f, tag=(tagp, f, 0))
            g.ds_read('ds_read_b64_tr_b16', r[2:4], base, offset=1024 * f + 256, tag=(tagp, f, 1))

        def epilogue_ops(acc):
            ops = []
            def addr():
                if kind == 'f':
                    g.I('s_lshl_b32', sEpi, sNt, 11)
                    g.I('s_add_u32', sEpi, sEpi, sOutBase)
                else:
                    g.I('s_lshr_b32', sEpi, sNt, 2)
                    g.I('s_lshl_b32', sEpi, sEpi, 19)
                    g.I('s_and_b32', sEpi2, sNt, 3)
                    g.I('s_lshl_b32', sEpi2, sEpi2, 11 if kind == 'qk' else 10)
                    g.I('s_add_u32', sEpi, sEpi, sEpi2)
                    g.I('s_add_u32', sEpi, sEpi, sOutBase)
                    if kind == 'v':
                        g.I('s_add_u32', sEpi2, sEpi, 4096)
                g.I('s_add_u32', sNt, sNt, 1)
            ops.append(addr)
            if kind == 'f':
                for e0 in range(0, 16, 4):
                    es = list(range(e0, e0 + 4))
                    ops.append(lambda es=es: [g.I('v_mul_f32', gt[i], acc[e], acc[e]) for i, e in enumerate(es)])
                    ops.append(lambda es=es: [g.I('v_fma_f32', gt[i], gt[i], sC2, vC1) for i, e in enumerate(es)])
                    ops.append(lambda es=es: [g.I('v_mul_f32', gt[i], gt[i], acc[e]) for i, e in enumerate(es)])
                    ops.append(lambda es=es: [g.I('v_exp_f32', gt[i], gt[i]) for i, e in enumerate(es)])
                    ops.append(lambda es=es: [g.I('v_add_f32', gt[i], 1.0, gt[i]) for i, e in enumerate(es)])
                    ops.append(lambda es=es: [g.I('v_rcp_f32', gt[i], gt[i]) for i, e in enumerate(es)])
                    ops.append(lambda es=es: [g.I('v_mul_f32', acc[e], acc[e], gt[i]) for i, e in enumerate(es)])
            for k in range(8):
                ops.append(lambda k=k: g.I('v_cvt_pk_bf16_f32', pk[k], acc[2 * k], acc[2 * k + 1]))
            if kind == 'v':
                ops.append(lambda: g.buf_store('dwordx4', pk[0:4], vOut, srdO, sEpi, tag='st'))
                ops.append(lambda: g.buf_store('dwordx4', pk[4:8], vOut, srdO, sEpi2, tag='st'))
            else:
                ops.append(lambda: g.buf_store('dwordx4', pk[0:4], vOut, srdO, sEpi, tag='st'))
                ops.append(lambda: g.buf_store('dwordx4', pk[4:8], vOut, srdO, sEpi, offset=1024, tag='st'))
            return ops

        def iteration(acc, prev, bC, bN, first):
            if not first:
                g.wait_vm_n(6)
                g.I('s_barrier')
                stamp()
            dma_tile()
            fill = [] if first else epilogue_ops(prev)
            fi = 0
            per = max(1, math.ceil(len(fill) / 28)) if fill else 0
            if kind == 'f':
                g.ds_read('ds_read_u16', vBblk[0], vBaddr, tag='b')
                g.I('v_add_u32', vBaddr, 64, vBaddr)
            for st in range(32):
                f = st + DEPTH - 1
                if f < 32:
                    issue_frag(f, bC, 'c')
                else:
                    issue_frag(f - 32, bN, 'n')
                g.wait_lds(('c', st, 1))
                w = ring[st % DEPTH]
                xs = X[4 * st:4 * st + 4]
                c = 0 if st == 0 else acc
                if kind == 'v':
                    g.I('v_mfma_f32_32x32x16_bf16', acc, xs, w, c)
                else:
                    g.I('v_mfma_f32_32x32x16_bf16', acc, w, xs, c)
                if st >= 2:
                    for _ in range(per):
                        if fi < len(fill):
                            fill[fi](); fi += 1
            while fi < len(fill):
                fill[fi](); fi += 1
            if kind == 'f':
                g.wait_lds('b')
                g.I('v_mfma_f32_32x32x16_bf16', acc, vBblk, vOnes, acc)
            g.lds_q = [('c',) + t[1:] if (isinstance(t, tuple) and t[0] == 'n') else t for t in g.lds_q]
            g.I('s_add_u32', sSlotRd, sSlotRd, SLOT)
            g.I('s_and_b32', sSlotRd, sSlotRd, RING * SLOT - 1)
            g.I('v_add_u32', bC, sSlotRd, vLanePart)

        def final_epilogue(acc):
            stamp()
            g.I('s_nop', 15)
            for op in epilogue_ops(acc):
                op()
            g.wait_vm_all()
            stamp()

        for f in range(DEPTH - 1):
            issue_frag(f, vTr[0], 'c')
        q0 = list(g.lds_q)
        iteration(accA, None, vTr[0], vTr[1], True)
        assert g.lds_q == q0, (g.lds_q, q0)
        g.I('s_sub_u32', sIter, sCnt, 1)
        g.label(Lloop)
        iteration(accB, accA, vTr[1], vTr[0], False)
        assert g.lds_q == q0
        g.I('s_sub_u32', sIter, sIter, 1)
        g.I('s_cmp_eq_u32', sIter, 0)
        g.I('s_cbranch_scc1', LendB)
        iteration(accA, accB, vTr[0], vTr[1], False)
        assert g.lds_q == q0
        g.I('s_sub_u32', sIter, sIter, 1)
        g.I('s_cmp_lg_u32', sIter, 0)
        g.I('s_cbranch_scc1', Lloop)
        g.label(LendA)
        final_epilogue(accA)
        g.I('s_branch', L_end)
        g.label(LendB)
        final_epilogue(accB)
        g.I('s_branch', L_end)

    Lv = "proj_type_v"; Lf = "proj_type_f"
    g.I('s_cmp_eq_u32', sType, 2)
    g.I('s_cbranch_scc1', Lv)
    g.I('s_cmp_eq_u32', sType, 3)
    g.I('s_cbranch_scc1', Lf)
    save = (list(g.lds_q), list(g.vm_q))
    body('qk')
    g.label(Lv)
    g.lds_q, g.vm_q = list(save[0]), list(save[1])
    body('v')
    g.label(Lf)
    g.lds_q, g.vm_q = list(save[0]), list(save[1])
    body('f')
    g.label(L_end)
    g.I('s_endpgm')
    probs = g.verify_edges()
    assert not probs, probs
    return g, v.hi, s.hi
```

```python
import sys, os
sys.path.insert(0, os.path.dirname(os.path.abspath(__file__)))
from common import *
import k_ln

REF = "parallel_sum__compressed_kv_cla__dense_activation_gelu__prompt.s.ref"

def header(launches):
    lines = []
    for l in open(REF).read().splitlines():
        if not l.startswith(';'):
            break
        if '@launch' in l:
            continue
        lines.append(l)
    for (name, grid, block, lds) in launches:
        lines.append(f"; @launch kernel={name} grid=({grid},1,1) block=({block},1,1) lds={lds}")
    return "\n".join(lines) + "\n" + '.amdgcn_target "amdgcn-amd-amdhsa--gfx950"\n'

def build(which=("ln","proj","attn","out"), out_path=None):
    launches = []; bodies = []
    if "ln" in which:
        g, nv, ns = k_ln.gen_ln()
        launches.append((k_ln.LN_NAME, k_ln.LN_WGS, 256, 0)); bodies.append(kernel_text(k_ln.LN_NAME, g, nv, ns))
    if "proj" in which:
        import k_proj
        g, nv, ns = k_proj.gen_proj()
        launches.append((k_proj.PROJ_NAME, k_proj.PROJ_WGS, 512, k_proj.PROJ_LDS)); bodies.append(kernel_text(k_proj.PROJ_NAME, g, nv, ns))
    if "attn" in which:
        import k_attn
        g, nv, ns, probs = k_attn.gen_attn()
        for p in probs: print('EDGE PROBLEM', p)
        launches.append((k_attn.ATTN_NAME, k_attn.ATTN_WGS, 512, k_attn.ATTN_LDS)); bodies.append(kernel_text(k_attn.ATTN_NAME, g, nv, ns))
    if "out" in which:
        import k_out
        g, nv, ns = k_out.gen_out()
        launches.append((k_out.OUT_NAME, k_out.OUT_WGS, k_out.OUT_THREADS, k_out.OUT_LDS)); bodies.append(kernel_text(k_out.OUT_NAME, g, nv, ns))
    txt = header(launches) + "\n".join(bodies)
    if out_path:
        open(out_path, "w").write(txt)
    return txt

if __name__ == "__main__":
    which = sys.argv[2].split(",") if len(sys.argv) > 2 else ("ln","proj","attn","out")
    out = sys.argv[1] if len(sys.argv) > 1 else "out.s"
    build(which, out)
    print("wrote", out, os.path.getsize(out))
```

```python
from common import *

ATTN_NAME = "attn_kernel"
ATTN_WGS = 256
ML_LDS = 131072
ATTN_LDS = ML_LDS + 4096
DMA_SPACING = 2
FD = 8
SCALE_LOG2E = (128 ** -0.5) * 1.4426950408889634


def kslot(g_, p):
    return (2 * g_ + p) * 16384


def vslot(g_, p):
    return 65536 + (2 * g_ + p) * 16384


STAMP = False
STAMP_OFF = 77 * MB
EXP_NO_RESCALE = False
EXP_NO_SOFTMAX = False
EXP_NO_EXP = False
EXP_NO_DMA = False
EXP_NO_LDSREAD = False
EXP_NO_BARRIER = False


def gen_attn():
    g = Gen()
    v = Alloc('v', 1, 256)
    s = Alloc('s', 3, 102)
    L_end = "attn_end"
    g.I('s_cmp_ge_u32', 's2', ATTN_WGS)
    g.I('s_cbranch_scc1', L_end)
    pWS = s(2)
    g.I('s_load_dwordx2', pWS, 's[0:1]', KA_WS)

    sW = s(); sWq = s(); sGrp = s(); sHead = s(); sPair = s(); sTmp = s(); sTmp2 = s()
    vT = v(); vLane = v()
    g.I('v_lshrrev_b32', vT, 6, 'v0')
    g.I('v_and_b32', vLane, 63, 'v0')
    g.I('v_readfirstlane_b32', sW, vT)
    g.I('s_and_b32', sWq, sW, 3)
    g.I('s_lshr_b32', sGrp, sW, 2)
    g.I('s_lshr_b32', sTmp, 's2', 3)
    g.I('s_and_b32', sPair, sTmp, 7)
    g.I('s_lshr_b32', sTmp, sTmp, 3)
    g.I('s_and_b32', sHead, 's2', 7)
    g.I('s_lshl_b32', sHead, sHead, 2)
    g.I('s_add_u32', sHead, sHead, sTmp)
    g.I('s_waitcnt', 'lgkmcnt(0)')
    g.lds_q = []
    srd = s(4)
    make_srd(g, srd, pWS[0], pWS[1], WS_BYTES)

    Q = v(32); O = v(64); Sb = v(64); P = v(16)
    ring = [v(4) for _ in range(FD)]
    vML = v(2); vM = vML[0]; vL = vML[1]
    vAlphaP = v(2); vAlpha = vAlphaP[0]; vNmcP = v(2); vNmc = vNmcP[0]; vMnew = v()
    ttb = v(4); tt = [ttb[k] for k in range(4)]
    vNegInf = v(); vQrel = v()
    vLane16 = v(); vKaddr = [v(), v()]; vVaddr = [v(), v()]; vXaddr = v()
    Sreg = [Sb[0:32], Sb[32:64]]
    sCp = s(2); sC = sCp[0]; sNegC = s(); sNegBig = s(); sThr = s(); sFlag = s()
    sBlk = s(); sI = s(); sRem = s(); sQoff = s(); sQoff2 = s()
    sDmaG = s(); sDmaG2 = s(); sDmaRem = s(); sDmaL = [s(), s()]; sDmaL4 = s(); sSelG = s(); sOOB = s()
    sHeadK = s(); sHeadV = s(); sCtx = s(); sCtx2 = s()
    sMask = [s(2) for _ in range(4)]

    g.I('s_mov_b32', sC, hex(f32bits(SCALE_LOG2E)))
    g.I('s_mov_b32', sNegC, hex(f32bits(-SCALE_LOG2E)))
    g.I('s_mov_b32', sNegBig, hex(f32bits(-1e30)))
    g.I('s_mov_b32', sThr, hex(f32bits(8.0 / SCALE_LOG2E)))
    g.I('s_mov_b32', sFlag, 0)
    g.I('s_mov_b32', sOOB, '0x40000000')
    g.I('s_mov_b32', sCp[1], sC)
    g.I('v_mov_b32', vNegInf, '0xff800000')
    g.I('v_lshlrev_b32', vLane16, 4, vLane)
    for p in range(2):
        g.I('s_lshl_b32', sTmp, sGrp, 15)
        g.I('s_add_u32', sTmp, sTmp, kslot(0, p))
        g.I('v_add_u32', vKaddr[p], sTmp, vLane16)
        g.I('s_add_u32', sTmp, sTmp, 65536)
        g.I('v_add_u32', vVaddr[p], sTmp, vLane16)
    g.I('s_lshl_b32', sTmp, sWq, 14)
    g.I('v_add_u32', vXaddr, sTmp, vLane16)
    g.I('v_and_b32', vQrel, 31, vLane)
    g.I('s_lshl_b32', sTmp, sWq, 5)
    g.I('s_lshl_b32', sTmp2, sGrp, 6)
    g.I('s_sub_u32', sTmp, sTmp, sTmp2)
    g.I('v_add_u32', vQrel, sTmp, vQrel)
    g.I('v_lshrrev_b32', vT, 5, vLane)
    g.I('v_lshlrev_b32', vT, 2, vT)
    g.I('v_sub_u32', vQrel, vQrel, vT)
    g.I('s_lshl_b32', sTmp, sHead, 19)
    g.I('s_add_u32', sHeadK, sTmp, hex(KF_OFF))
    g.I('s_add_u32', sHeadV, sTmp, hex(VF_OFF))
    g.I('s_mov_b32', sBlk, 0)

    sStamp = s(2); sStampOff = s(); vStamp = v(); vStampA = v()
    if STAMP:
        g.I('s_lshl_b32', sStampOff, 's2', 8)
        g.I('s_add_u32', sStampOff, sStampOff, hex(STAMP_OFF))
        g.I('v_mov_b32', vStampA, 0)

    def stamp():
        if not STAMP:
            return
        Ls = g.newlabel("astamp")
        g.I('s_cmp_lg_u32', sW, 0)
        g.I('s_cbranch_scc1', Ls)
        g.I('s_memtime', sStamp)
        g.I('s_waitcnt', 'lgkmcnt(0)')
        g.I('v_mov_b32', vStamp, sStamp[0])
        g.I('buffer_store_dword', vStamp, vStampA, srd, sStampOff, mods="offen")
        g.I('s_add_u32', sStampOff, sStampOff, 4)
        g.label(Ls)
        g.I('s_nop', 7)

    def issue_frag(idx, base, off, tag):
        if EXP_NO_LDSREAD:
            return
        g.ds_read('ds_read_b128', ring[idx % FD], base, offset=off, tag=tag)

    def make_steps(kind, p_rd):
        steps = []
        if kind == 'pv':
            for m in range(4):
                for b in range(4):
                    def mf(fr, m=m, b=b):
                        d = O[16 * b:16 * b + 16]
                        g.I('v_mfma_f32_32x32x16_bf16', d, fr, P[4 * m:4 * m + 4], d)
                    steps.append(((vVaddr[p_rd], m * 4096 + b * 1024), mf))
        else:
            for st in range(8):
                for u in range(2):
                    def mf(fr, st=st, u=u, Sd=kind[1]):
                        d = Sd[16 * u:16 * u + 16]
                        g.I('v_mfma_f32_32x32x16_bf16', d, fr, Q[4 * st:4 * st + 4], 0 if st == 0 else d)
                    steps.append(((vKaddr[p_rd], u * 8192 + st * 1024), mf))
        return steps

    def run_stream(steps, fillers, lead=10, extra=()):
        n = len(steps)
        nf = sum(1 for f in fillers if not isinstance(f, tuple))
        fi = 0
        emitted_f = 0

        def emit_fill(upto):
            nonlocal fi, emitted_f
            while fi < len(fillers) and emitted_f < upto:
                f = fillers[fi]
                if isinstance(f, tuple):
                    if cur_step[0] < f[1]:
                        return
                    fi += 1
                    continue
                f(); fi += 1; emitted_f += 1

        cur_step = [0]
        for k in range(min(FD - 1, n)):
            (base, off), _ = steps[k]
            issue_frag(k, base, off, ('fr', k))
        emit_fill(lead)
        for k in range(n):
            if k + FD - 1 < n:
                (base, off), _ = steps[k + FD - 1]
                issue_frag(k + FD - 1, base, off, ('fr', k + FD - 1))
            g.wait_lds(('fr', k))
            steps[k][1](ring[k % FD])
            cur_step[0] = k + 1
            if extra and k % DMA_SPACING == 0 and (k // DMA_SPACING) < len(extra):
                extra[k // DMA_SPACING]()
            emit_fill(lead + (nf - lead) * (k + 1) // n if nf > lead else nf)
        emit_fill(10 ** 9)
        assert fi == len(fillers), (fi, len(fillers))

    rare_blocks = []

    def softmax_fill(Sc, masked, n_pv_steps):
        F_ = []
        A = lambda fn: F_.append(fn)
        if masked:
            for r0 in range(0, 32, 4):
                for k in range(4):
                    r = r0 + k
                    const = 32 * (r // 16) + 8 * ((r % 16) // 4) + (r % 4)
                    A(lambda r=r, k=k, const=const: g.I('v_cmp_le_i32', sMask[k], const, vQrel))
                for k in range(4):
                    r = r0 + k
                    A(lambda r=r, k=k: g.I('v_cndmask_b32', Sc[r], vNegInf, Sc[r], sMask[k]))
        for c in range(4):
            A(lambda c=c: g.I('v_max3_f32', tt[c], Sc[8 * c], Sc[8 * c + 1], Sc[8 * c + 2]))
        for c in range(4):
            A(lambda c=c: g.I('v_max3_f32', tt[c], tt[c], Sc[8 * c + 3], Sc[8 * c + 4]))
        for c in range(4):
            A(lambda c=c: g.I('v_max3_f32', tt[c], tt[c], Sc[8 * c + 5], Sc[8 * c + 6]))
        for c in range(4):
            A(lambda c=c: g.I('v_max_f32', tt[c], tt[c], Sc[8 * c + 7]))
        A(lambda: g.I('v_max3_f32', tt[0], tt[0], tt[1], tt[2]))
        A(lambda: g.I('v_max_f32', tt[0], tt[0], tt[3]))
        A(lambda: g.I('v_mov_b32', tt[1], tt[0]))
        A(lambda: g.I('v_permlane32_swap_b32', tt[0], tt[1]))
        A(lambda: g.I('v_max_f32', tt[0], tt[0], tt[1]))

        def guard():
            Lr = g.newlabel("attn_rare"); Lb = g.newlabel("attn_back")
            g.I('v_sub_f32', tt[1], tt[0], vM)
            g.I('v_cmp_lt_f32', 'vcc', sThr, tt[1])
            g.I('s_cbranch_vccnz', Lr)
            g.label(Lb)
            rare_blocks.append((Lr, Lb))
        A(guard)
        for r0 in range(0, 32, 4):
            for k in range(4):
                A(lambda r=r0 + k: g.I('v_fma_f32', Sc[r], Sc[r], sC, vNmc))
            for k in range(4):
                A(lambda r=r0 + k: g.I('v_exp_f32', Sc[r], Sc[r]))
        for c in range(4):
            A(lambda c=c: g.I('v_add_f32', tt[c], Sc[8 * c], Sc[8 * c + 1]))
        for k in range(2, 8):
            for c in range(4):
                A(lambda c=c, k=k: g.I('v_add_f32', tt[c], tt[c], Sc[8 * c + k]))
        A(lambda: g.I('v_add_f32', tt[0], tt[0], tt[1]))
        A(lambda: g.I('v_add_f32', tt[2], tt[2], tt[3]))
        A(lambda: g.I('v_add_f32', tt[0], tt[0], tt[2]))
        A(lambda: g.I('v_add_f32', vL, vL, tt[0]))
        F_.append(('after', n_pv_steps))
        for k in range(16):
            A(lambda k=k: g.I('v_cvt_pk_bf16_f32', P[k], Sc[2 * k], Sc[2 * k + 1]))
        if EXP_NO_SOFTMAX and not masked:
            return [('after', n_pv_steps)]
        return F_

    def rescale_if_needed():
        Ln = g.newlabel("attn_noresc")
        g.I('s_cmp_eq_u32', sFlag, 0)
        g.I('s_cbranch_scc1', Ln)
        for r in range(0, 64, 2):
            g.I('v_pk_mul_f32', O[r:r + 2], O[r:r + 2], vAlphaP, mods="op_sel_hi:[1,0]")
        g.I('s_mov_b32', sFlag, 0)
        g.label(Ln)

    def dma_prepare(p):
        g.I('s_cmp_lg_u32', sDmaRem, 0)
        g.I('s_cselect_b32', sSelG, sDmaG, sOOB)
        g.I('s_cselect_b32', sTmp, 1, 0)
        g.I('s_sub_u32', sDmaRem, sDmaRem, sTmp)
        g.I('s_add_u32', sDmaG2, sSelG, 4096)
        g.I('s_add_u32', sDmaL4, sDmaL[p], 4096)
        g.I('s_add_u32', sDmaG, sDmaG, 32768)

    def dma_thunks(p):
        if EXP_NO_DMA:
            return []
        T = []
        for q in range(8):
            def th(q=q):
                g.I('s_mov_b32', 'm0', sDmaL[p] if q < 4 else sDmaL4)
                g.buf_load_lds(vLane16, srd, sSelG if q < 4 else sDmaG2, offset=1024 * (q % 4))
            T.append(th)
        return T

    def emit_round(p, has_pv, has_qk, masked):
        g.I('s_waitcnt', 'vmcnt(0)')
        if not (EXP_NO_BARRIER and not masked):
            g.I('s_barrier')
        stamp()
        dma_prepare(p)
        g.I('s_nop', 1)
        steps = []
        if has_pv:
            steps += make_steps('pv', 1 - p)
        npv = len(steps)
        if has_qk:
            steps += make_steps(('qk', Sreg[1 - p]), 1 - p)
        fill = softmax_fill(Sreg[p], masked, npv)
        dm = dma_thunks(p)
        if steps:
            run_stream(steps, fill, extra=dm)
        else:
            for f in dm:
                f()
            for f in fill:
                if not isinstance(f, tuple):
                    f()
        rescale_if_needed()

    def emit_tail(p):
        g.I('s_waitcnt', 'vmcnt(0)')
        g.I('s_barrier')
        stamp()
        run_stream(make_steps('pv', p), [])

    L_blk = "attn_blk"
    g.label(L_blk)
    stamp()
    g.I('s_sub_u32', sTmp, 15, sPair)
    g.I('s_cmp_eq_u32', sBlk, 0)
    g.I('s_cselect_b32', sI, sTmp, sPair)
    g.I('v_mov_b32', vM, vNegInf)
    g.I('v_mov_b32', vL, 0)
    for r in range(64):
        g.I('v_mov_b32', O[r], 0)
    g.I('s_lshl_b32', sTmp, sI, 2)
    g.I('s_add_u32', sTmp, sTmp, sWq)
    g.I('s_lshl_b32', sQoff, sHead, 6)
    g.I('s_add_u32', sQoff, sQoff, sTmp)
    g.I('s_lshl_b32', sQoff, sQoff, 13)
    if QF_OFF:
        g.I('s_add_u32', sQoff, sQoff, hex(QF_OFF))
    g.I('s_add_u32', sQoff2, sQoff, 4096)
    g.I('s_lshl_b32', sCtx, sTmp, 18)
    g.I('s_lshl_b32', sTmp2, sHead, 13)
    g.I('s_add_u32', sCtx, sCtx, sTmp2)
    g.I('s_add_u32', sCtx, sCtx, hex(CF_OFF))
    g.I('s_add_u32', sCtx2, sCtx, 4096)
    g.vm_q = []
    for st in range(8):
        g.buf_load('dwordx4', Q[4 * st:4 * st + 4], vLane16, srd, sQoff if st < 4 else sQoff2,
                   offset=1024 * (st % 4), tag='q')
    g.I('s_lshl_b32', sTmp, sGrp, 14)
    g.I('s_add_u32', sTmp, sTmp, sHeadK)
    g.I('s_lshl_b32', sTmp2, sWq, 12)
    g.I('s_add_u32', sTmp, sTmp, sTmp2)
    g.I('s_lshl_b32', sDmaL4, sGrp, 15)
    g.I('s_add_u32', sDmaL4, sDmaL4, sTmp2)
    g.I('s_mov_b32', 'm0', sDmaL4)
    for q in range(4):
        g.buf_load_lds(vLane16, srd, sTmp, offset=1024 * q, tag='k0')
    g.I('s_add_u32', sTmp, sTmp, 32768)
    g.I('s_add_u32', sDmaL4, sDmaL4, 16384)
    g.I('s_mov_b32', 'm0', sDmaL4)
    for q in range(4):
        g.buf_load_lds(vLane16, srd, sTmp, offset=1024 * q, tag='k1')
    g.I('s_bfe_u32', sTmp, sW, '0x10001')
    g.I('s_and_b32', sTmp2, sW, 1)
    g.I('s_lshl_b32', sTmp2, sTmp2, 13)
    g.I('s_lshl_b32', sDmaG, sTmp, 14)
    g.I('s_add_u32', sDmaG, sDmaG, sTmp2)
    g.I('s_lshl_b32', sDmaL[0], sTmp, 15)
    g.I('s_add_u32', sDmaL[0], sDmaL[0], sTmp2)
    g.I('s_cmp_eq_u32', sGrp, 0)
    g.I('s_cselect_b32', sTmp, sHeadK, sHeadV)
    g.I('s_add_u32', sDmaG, sDmaG, sTmp)
    g.I('s_cmp_eq_u32', sGrp, 0)
    g.I('s_cselect_b32', sTmp, 65536, 0)
    g.I('s_add_u32', sDmaG, sDmaG, sTmp)
    g.I('s_cmp_eq_u32', sGrp, 0)
    g.I('s_cselect_b32', sTmp, 0, 65536)
    g.I('s_add_u32', sDmaL[0], sDmaL[0], sTmp)
    g.I('s_add_u32', sDmaL[1], sDmaL[0], 16384)
    g.I('s_sub_u32', sTmp, sI, 1)
    g.I('s_cmp_eq_u32', sI, 0)
    g.I('s_cselect_b32', sTmp, 0, sTmp)
    g.I('s_add_u32', sTmp2, sI, 1)
    g.I('s_cmp_eq_u32', sGrp, 0)
    g.I('s_cselect_b32', sDmaRem, sTmp, sTmp2)
    g.wait_vm('k0')
    g.I('s_barrier')
    run_stream(make_steps(('qk', Sreg[0]), 0), [])

    L_single = "attn_single"; L_loop = "attn_loop"; L_last0 = "attn_last0"; L_last1 = "attn_last1"
    L_merge = "attn_merge"
    g.I('s_cmp_eq_u32', sI, 0)
    g.I('s_cbranch_scc1', L_single)
    emit_round(0, False, True, False)
    g.I('s_mov_b32', sRem, 1)
    g.label(L_loop)
    g.I('s_cmp_eq_u32', sRem, sI)
    g.I('s_cbranch_scc1', L_last1)
    emit_round(1, True, True, False)
    g.I('s_add_u32', sRem, sRem, 1)
    g.I('s_cmp_eq_u32', sRem, sI)
    g.I('s_cbranch_scc1', L_last0)
    emit_round(0, True, True, False)
    g.I('s_add_u32', sRem, sRem, 1)
    g.I('s_branch', L_loop)
    g.label(L_last1)
    emit_round(1, True, False, True)
    emit_tail(1)
    g.I('s_branch', L_merge)
    g.label(L_last0)
    emit_round(0, True, False, True)
    emit_tail(0)
    g.I('s_branch', L_merge)
    g.label(L_single)
    emit_round(0, False, False, True)
    emit_tail(0)

    g.label(L_merge)
    stamp()
    L_g0 = "attn_g0"; L_next = "attn_next"
    g.I('s_cmp_eq_u32', sGrp, 0)
    g.I('s_cbranch_scc1', L_g0)
    for k in range(16):
        g.ds_write('ds_write_b128', vXaddr, O[4 * k:4 * k + 4], offset=1024 * k)
    g.I('s_lshl_b32', sTmp, sWq, 9)
    g.I('s_add_u32', sTmp, sTmp, ML_LDS)
    g.I('v_lshlrev_b32', vT, 3, vLane)
    g.I('v_add_u32', vT, sTmp, vT)
    g.ds_write('ds_write_b64', vT, vML)
    g.wait_lds_all()
    g.I('s_barrier')
    g.I('s_barrier')
    g.I('s_branch', L_next)
    g.label(L_g0)
    g.I('s_barrier')
    g.lds_q = []
    for k in range(16):
        g.ds_read('ds_read_b128', Sb[4 * k:4 * k + 4], vXaddr, offset=1024 * k, tag=('o1', k))
    g.I('s_lshl_b32', sTmp, sWq, 9)
    g.I('s_add_u32', sTmp, sTmp, ML_LDS)
    g.I('v_lshlrev_b32', vT, 3, vLane)
    g.I('v_add_u32', vT, sTmp, vT)
    ml1 = ttb[0:2]
    g.ds_read('ds_read_b64', ml1, vT, tag='ml')
    g.wait_lds_all()
    g.I('s_barrier')
    g.I('v_max_f32', vMnew, vM, ml1[0])
    g.I('v_sub_f32', vAlpha, vM, vMnew)
    g.I('v_sub_f32', vNmc, ml1[0], vMnew)
    g.I('v_mul_f32', vAlpha, sC, vAlpha)
    g.I('v_mul_f32', vNmc, sC, vNmc)
    g.I('v_exp_f32', vAlpha, vAlpha)
    g.I('v_exp_f32', vNmc, vNmc)
    g.I('v_mul_f32', vL, vL, vAlpha)
    g.I('v_fmac_f32', vL, ml1[1], vNmc)
    g.I('v_mov_b32', tt[2], vL)
    g.I('v_permlane32_swap_b32', vL, tt[2])
    g.I('v_add_f32', vL, vL, tt[2])
    g.I('v_rcp_f32', vL, vL)
    g.I('v_mul_f32', vAlpha, vAlpha, vL)
    g.I('v_mul_f32', vNmc, vNmc, vL)
    for e in range(8):
        pk = P[4 * (e % 4):4 * (e % 4) + 4]
        for k in range(8):
            r = 8 * e + k
            g.I('v_mul_f32', O[r], O[r], vAlpha)
            g.I('v_fmac_f32', O[r], Sb[r], vNmc)
        for k in range(4):
            g.I('v_cvt_pk_bf16_f32', pk[k], O[8 * e + 2 * k], O[8 * e + 2 * k + 1])
        g.buf_store('dwordx4', pk, vLane16, srd, sCtx if e < 4 else sCtx2, offset=1024 * (e % 4))
    g.label(L_next)
    stamp()
    g.I('s_add_u32', sBlk, sBlk, 1)
    g.I('s_cmp_lt_u32', sBlk, 2)
    g.I('s_cbranch_scc1', L_blk)
    g.label(L_end)
    g.I('s_endpgm')
    for (Lr, Lb) in rare_blocks:
        g.label(Lr)
        g.I('v_max3_f32', vMnew, vM, tt[0], sNegBig)
        g.I('v_sub_f32', vAlpha, vM, vMnew)
        g.I('v_mul_f32', vNmc, sNegC, vMnew)
        g.I('v_mul_f32', vAlpha, sC, vAlpha)
        g.I('v_mov_b32', vM, vMnew)
        g.I('v_exp_f32', vAlpha, vAlpha)
        g.I('v_mul_f32', vL, vL, vAlpha)
        g.I('s_mov_b32', sFlag, 1)
        g.I('s_branch', Lb)
    probs = g.verify_edges()
    return g, v.hi, s.hi, probs
```

```python
from common import *

OUT_NAME = "out_kernel"
OUT_WGS = 256
OUT_THREADS = 512
STG = 32768
NRING = 4
OUT_LDS = NRING * STG
NST = 43
OOB = 0x40000000
PD = 2


def gen_out():
    g = Gen()
    v = Alloc('v', 1, 256)
    s = Alloc('s', 3, 102)
    L_end = "out_end"
    g.I('s_cmp_ge_u32', 's2', OUT_WGS)
    g.I('s_cbranch_scc1', L_end)
    pX = s(2); pWo = s(2); pW2 = s(2); pB2 = s(2); pOut = s(2); pWS = s(2)
    g.I('s_load_dwordx2', pX, 's[0:1]', KA_X)
    g.I('s_load_dwordx2', pWo, 's[0:1]', KA_WO)
    g.I('s_load_dwordx2', pW2, 's[0:1]', KA_W2)
    g.I('s_load_dwordx2', pB2, 's[0:1]', KA_B2)
    g.I('s_load_dwordx2', pOut, 's[0:1]', KA_OUT)
    g.I('s_load_dwordx2', pWS, 's[0:1]', KA_WS)
    sW = s(); sWt = s(); sWf = s(); sTb = s(); sFb = s(); sTmp = s(); sTmp2 = s()
    vT = v(); vLane = v(); vH = v(); vC = v()
    g.I('v_lshrrev_b32', vT, 6, 'v0')
    g.I('v_and_b32', vLane, 63, 'v0')
    g.I('v_readfirstlane_b32', sW, vT)
    g.I('v_lshrrev_b32', vH, 5, vLane)
    g.I('v_and_b32', vC, 31, vLane)
    sKh = s()
    g.I('s_and_b32', sWt, sW, 1)
    g.I('s_bfe_u32', sWf, sW, '0x10001')
    g.I('s_lshr_b32', sKh, sW, 2)
    g.I('s_lshr_b32', sTmp, 's2', 3)
    g.I('s_and_b32', sFb, sTmp, 7)
    g.I('s_lshr_b32', sTmp, sTmp, 3)
    g.I('s_lshl_b32', sTmp, sTmp, 3)
    g.I('s_and_b32', sTb, 's2', 7)
    g.I('s_add_u32', sTb, sTb, sTmp)
    g.I('s_waitcnt', 'lgkmcnt(0)')
    g.lds_q = []
    srdX = s(4); srdW = s(4); srdB = s(4); srdO = s(4); srdA = s(4)
    make_srd(g, srdX, pX[0], pX[1], S * M * 2)
    make_srd(g, srdW, pWo[0], pWo[1], 4096 * M * 2)
    make_srd(g, srdB, pB2[0], pB2[1], M * 2)
    make_srd(g, srdO, pOut[0], pOut[1], S * M * 2)
    make_srd(g, srdA, pWS[0], pWS[1], WS_BYTES)

    vEo = v(); vEb = v(); sEo = s(); sEb = s()
    g.I('v_lshlrev_b32', vEo, 10, vC)
    g.I('v_lshlrev_b32', vT, 3, vH)
    g.I('v_add_u32', vEo, vEo, vT)
    g.I('v_mov_b32', vEb, vT)
    g.I('s_lshl_b32', sEb, sFb, 6)
    g.I('s_lshl_b32', sTmp, sWf, 5)
    g.I('s_add_u32', sEb, sEb, sTmp)
    g.I('s_lshl_b32', sEb, sEb, 1)
    g.I('s_lshl_b32', sEo, sTb, 6)
    g.I('s_lshl_b32', sTmp, sWt, 5)
    g.I('s_add_u32', sEo, sEo, sTmp)
    g.I('s_lshl_b32', sEo, sEo, 10)
    g.I('s_add_u32', sEo, sEo, sEb)
    xr = v(8); br = v(8)
    for q in range(4):
        g.buf_load('dwordx2', xr[2 * q:2 * q + 2], vEo, srdX, sEo, offset=16 * q, tag='xr')
    for q in range(4):
        g.buf_load('dwordx2', br[2 * q:2 * q + 2], vEb, srdB, sEb, offset=16 * q, tag='br')

    vDma = v(); t1 = v()
    sActOff = s(); sWoff = s(); sSel = s(); sM0 = s(); sRoleL = s(); sDmaSt = s(); sSlotD = s(); sOOB = s()
    sWq = [s() for _ in range(4)]
    L_wrole = "out_wrole"; L_roledone = "out_roledone"
    g.I('s_mov_b32', sOOB, hex(OOB))
    g.I('s_cmp_ge_u32', sW, 4)
    g.I('s_cbranch_scc1', L_wrole)
    g.I('v_lshlrev_b32', vDma, 4, vLane)
    g.I('s_and_b32', sTmp, sW, 1)
    g.I('s_lshl_b32', sActOff, sTb, 1)
    g.I('s_add_u32', sActOff, sActOff, sTmp)
    g.I('s_lshr_b32', sTmp, sW, 1)
    g.I('s_lshl_b32', sTmp, sTmp, 12)
    g.I('s_mul_i32', sTmp2, sActOff, 86 * 1024)
    g.I('s_add_u32', sTmp2, sTmp2, hex(HF_OFF))
    g.I('s_add_u32', sTmp2, sTmp2, sTmp)
    g.I('s_lshl_b32', sActOff, sActOff, 18)
    g.I('s_add_u32', sActOff, sActOff, hex(CF_OFF))
    g.I('s_add_u32', sActOff, sActOff, sTmp)
    g.I('s_and_b32', sRoleL, sW, 1)
    g.I('s_lshl_b32', sRoleL, sRoleL, 13)
    g.I('s_add_u32', sRoleL, sRoleL, sTmp)
    g.I('s_branch', L_roledone)
    g.label(L_wrole)
    g.I('v_lshrrev_b32', vDma, 2, vLane)
    g.I('v_lshlrev_b32', vDma, 10, vDma)
    g.I('v_and_b32', t1, 3, vLane)
    g.I('v_lshlrev_b32', t1, 4, t1)
    g.I('v_add_u32', vDma, vDma, t1)
    g.I('s_and_b32', sTmp, sW, 1)
    g.I('s_lshl_b32', sWoff, sFb, 6)
    g.I('s_lshl_b32', sTmp2, sTmp, 5)
    g.I('s_add_u32', sWoff, sWoff, sTmp2)
    g.I('s_lshl_b32', sWoff, sWoff, 1)
    g.I('s_bfe_u32', sTmp2, sW, '0x10001')
    g.I('s_lshl_b32', sRoleL, sTmp, 13)
    g.I('s_add_u32', sRoleL, sRoleL, 16384)
    g.I('s_lshl_b32', sTmp, sTmp2, 12)
    g.I('s_add_u32', sRoleL, sRoleL, sTmp)
    g.I('s_lshl_b32', sTmp, sTmp2, 16)
    g.I('s_add_u32', sWoff, sWoff, sTmp)
    g.I('s_mov_b32', sTmp2, sWoff)
    g.label(L_roledone)
    sPh2 = s()
    g.I('s_mov_b32', sPh2, sTmp2)
    g.I('s_mov_b32', sDmaSt, 0)
    g.I('s_mov_b32', sSlotD, 0)

    def dma_stage():
        La = g.newlabel("out_dma_w"); Lb = g.newlabel("out_dma_done"); Lsw = g.newlabel("out_nosw")
        g.I('s_cmp_lg_u32', sDmaSt, 32)
        g.I('s_cbranch_scc1', Lsw)
        g.I('s_mov_b32', sActOff, sPh2)
        g.I('s_mov_b32', sWoff, sPh2)
        g.I('s_mov_b32', srdW[0], pW2[0])
        g.I('s_mov_b32', srdW[1], pW2[1])
        g.I('s_mov_b32', srdW[2], hex(F * M * 2))
        g.label(Lsw)
        g.I('s_add_u32', sM0, sSlotD, sRoleL)
        g.I('s_mov_b32', 'm0', sM0)
        g.I('s_cmp_ge_u32', sW, 4)
        g.I('s_cbranch_scc1', La)
        g.I('s_cmp_lt_u32', sDmaSt, NST)
        g.I('s_cselect_b32', sSel, sActOff, sOOB)
        for q in range(4):
            g.buf_load_lds(vDma, srdA, sSel, offset=1024 * q)
        g.I('s_add_u32', sActOff, sActOff, 8192)
        g.I('s_branch', Lb)
        g.label(La)
        g.I('s_cmp_lt_u32', sDmaSt, NST)
        g.I('s_cselect_b32', sSel, sWoff, sOOB)
        for q in range(1, 4):
            g.I('s_add_u32', sWq[q], sSel, q * 16384 - q * 1024)
        for q in range(4):
            g.buf_load_lds(vDma, srdW, sSel if q == 0 else sWq[q], offset=1024 * q)
        g.I('s_add_u32', sWoff, sWoff, 128 * 1024)
        g.label(Lb)
        g.I('s_add_u32', sDmaSt, sDmaSt, 1)
        g.I('s_add_u32', sSlotD, sSlotD, STG)
        g.I('s_and_b32', sSlotD, sSlotD, NRING * STG - 1)

    vLP = v(); vAp = v(); vWaddr = v(); vAaddr = v(); t2 = v()
    g.I('v_and_b32', t1, 15, vLane)
    g.I('v_lshrrev_b32', t1, 2, t1)
    g.I('v_lshlrev_b32', t2, 2, vH)
    g.I('v_add_u32', t1, t1, t2)
    g.I('v_lshlrev_b32', vLP, 6, t1)
    g.I('v_lshrrev_b32', t1, 4, vLane)
    g.I('v_and_b32', t1, 1, t1)
    g.I('v_lshlrev_b32', t1, 5, t1)
    g.I('v_add_u32', vLP, vLP, t1)
    g.I('v_and_b32', t1, 3, vLane)
    g.I('v_lshlrev_b32', t1, 3, t1)
    g.I('v_add_u32', vLP, vLP, t1)
    g.I('s_lshl_b32', sTmp, sWf, 13)
    g.I('s_add_u32', sTmp, sTmp, 16384)
    g.I('s_lshl_b32', sTmp2, sKh, 12)
    g.I('s_add_u32', sTmp, sTmp, sTmp2)
    g.I('v_add_u32', vLP, sTmp, vLP)
    g.I('v_lshlrev_b32', vAp, 4, vLane)
    g.I('s_lshl_b32', sTmp, sWt, 13)
    g.I('s_add_u32', sTmp, sTmp, sTmp2)
    g.I('v_add_u32', vAp, sTmp, vAp)
    acc = v(16)
    wf_ = [v(4) for _ in range(PD + 1)]
    af_ = [v(4) for _ in range(PD + 1)]
    sSlotR = s(); sSt = s()
    g.vm_q = []
    for _ in range(3):
        dma_stage()
    g.I('s_mov_b32', sSlotR, 0)
    g.I('s_mov_b32', sSt, 0)
    for r in range(16):
        g.I('v_mov_b32', acc[r], 0)

    def issue(ks):
        w = wf_[ks % (PD + 1)]; a = af_[ks % (PD + 1)]
        g.ds_read('ds_read_b64_tr_b16', w[0:2], vWaddr, offset=1024 * ks, tag=('w', ks, 0))
        g.ds_read('ds_read_b64_tr_b16', w[2:4], vWaddr, offset=1024 * ks + 512, tag=('w', ks, 1))
        g.ds_read('ds_read_b128', a, vAaddr, offset=1024 * ks, tag=('a', ks))

    L_loop = "out_loop"
    g.label(L_loop)
    g.I('s_waitcnt', 'vmcnt(8)')
    g.I('s_barrier')
    g.I('v_add_u32', vWaddr, sSlotR, vLP)
    g.I('v_add_u32', vAaddr, sSlotR, vAp)
    for ks in range(PD):
        issue(ks)
    dma_stage()
    for ks in range(4):
        if ks + PD < 4:
            issue(ks + PD)
        g.wait_lds(('a', ks))
        g.I('v_mfma_f32_32x32x16_bf16', acc, wf_[ks % (PD + 1)], af_[ks % (PD + 1)], acc)
    g.I('s_add_u32', sSlotR, sSlotR, STG)
    g.I('s_and_b32', sSlotR, sSlotR, NRING * STG - 1)
    g.I('s_add_u32', sSt, sSt, 1)
    g.I('s_cmp_lt_u32', sSt, NST)
    g.I('s_cbranch_scc1', L_loop)

    g.I('s_nop', 15)
    g.I('s_waitcnt', 'vmcnt(0)')
    g.I('s_barrier')
    L_lo = "out_lo"
    g.I('s_and_b32', sTmp, sW, 3)
    g.I('s_lshl_b32', sTmp, sTmp, 12)
    g.I('v_lshlrev_b32', t1, 4, vLane)
    g.I('v_add_u32', t1, sTmp, t1)
    g.I('s_cmp_lt_u32', sW, 4)
    g.I('s_cbranch_scc1', L_lo)
    for q in range(4):
        g.ds_write('ds_write_b128', t1, acc[4 * q:4 * q + 4], offset=1024 * q)
    g.wait_lds_all()
    g.I('s_barrier')
    g.I('s_branch', L_end)
    g.label(L_lo)
    g.I('s_barrier')
    oth = v(16)
    for q in range(4):
        g.ds_read('ds_read_b128', oth[4 * q:4 * q + 4], t1, offset=1024 * q, tag=('oth', q))
    g.wait_lds_all()
    for r in range(16):
        g.I('v_add_f32', acc[r], acc[r], oth[r])
    tf = v(8)
    pk = v(8)
    for q in range(4):
        for half in range(2):
            d = xr[2 * q + half]; b = br[2 * q + half]
            g.I('v_lshlrev_b32', tf[0], 16, d)
            g.I('v_and_b32', tf[1], '0xffff0000', d)
            g.I('v_lshlrev_b32', tf[2], 16, b)
            g.I('v_and_b32', tf[3], '0xffff0000', b)
            g.I('v_add_f32', tf[0], tf[0], tf[2])
            g.I('v_add_f32', tf[1], tf[1], tf[3])
            g.I('v_add_f32', acc[4 * q + 2 * half], acc[4 * q + 2 * half], tf[0])
            g.I('v_add_f32', acc[4 * q + 2 * half + 1], acc[4 * q + 2 * half + 1], tf[1])
        for half in range(2):
            g.I('v_cvt_pk_bf16_f32', pk[2 * q + half], acc[4 * q + 2 * half], acc[4 * q + 2 * half + 1])
        g.buf_store('dwordx2', pk[2 * q:2 * q + 2], vEo, srdO, sEo, offset=16 * q)
    g.label(L_end)
    g.I('s_endpgm')
    probs = g.verify_edges()
    assert not probs, probs
    return g, v.hi, s.hi
```

```python
from common import *

OUTG_NAME = "outg_kernel"
OUTG_WGS = 256
STG = 32768
NRING = 4
OUTG_LDS = NRING * STG
NST = 22
OOB = 0x40000000
PB_OFF = 80 * MB
RED_NAME = "red_kernel"
RED_WGS = 1024
PD = 2


def gen_outg():
    g = Gen()
    v = Alloc('v', 1, 256)
    s = Alloc('s', 3, 102)
    L_end = "outg_end"
    g.I('s_cmp_ge_u32', 's2', OUTG_WGS)
    g.I('s_cbranch_scc1', L_end)
    pWo = s(2); pW2 = s(2); pWS = s(2)
    g.I('s_load_dwordx2', pWo, 's[0:1]', KA_WO)
    g.I('s_load_dwordx2', pW2, 's[0:1]', KA_W2)
    g.I('s_load_dwordx2', pWS, 's[0:1]', KA_WS)
    sW = s(); sWt = s(); sWfh = s(); sTm = s(); sTn = s(); sSp = s(); sTmp = s(); sTmp2 = s()
    vT = v(); vLane = v(); vH = v()
    g.I('v_lshrrev_b32', vT, 6, 'v0')
    g.I('v_and_b32', vLane, 63, 'v0')
    g.I('v_readfirstlane_b32', sW, vT)
    g.I('v_lshrrev_b32', vH, 5, vLane)
    g.I('s_and_b32', sWt, sW, 3)
    g.I('s_lshr_b32', sWfh, sW, 2)
    g.I('s_lshr_b32', sTmp, 's2', 3)
    g.I('s_and_b32', sTn, sTmp, 3)
    g.I('s_bfe_u32', sSp, sTmp, '0x20002')
    g.I('s_lshr_b32', sTmp, sTmp, 4)
    g.I('s_lshl_b32', sTmp, sTmp, 3)
    g.I('s_and_b32', sTm, 's2', 7)
    g.I('s_add_u32', sTm, sTm, sTmp)
    g.I('s_waitcnt', 'lgkmcnt(0)')
    g.lds_q = []
    srdW = s(4); srdA = s(4)
    g.I('s_cmp_eq_u32', sSp, 3)
    g.I('s_cselect_b32', srdW[0], pW2[0], pWo[0])
    g.I('s_cselect_b32', srdW[1], pW2[1], pWo[1])
    g.I('s_mov_b32', sTmp, hex(F * M * 2))
    g.I('s_cselect_b32', srdW[2], sTmp, hex(4096 * M * 2))
    g.I('s_mov_b32', srdW[3], hex(SRD_FLAGS))
    make_srd(g, srdA, pWS[0], pWS[1], WS_BYTES)
    sK0 = s(); sLen = s()
    g.I('s_mov_b32', sK0, 0)
    g.I('s_cmp_eq_u32', sSp, 1)
    g.I('s_cselect_b32', sK0, 86, sK0)
    g.I('s_cmp_eq_u32', sSp, 2)
    g.I('s_cselect_b32', sK0, 171, sK0)
    g.I('s_mov_b32', sLen, 86)
    g.I('s_cmp_eq_u32', sSp, 1)
    g.I('s_cselect_b32', sLen, 85, sLen)
    g.I('s_cmp_eq_u32', sSp, 2)
    g.I('s_cselect_b32', sLen, 85, sLen)

    vDma = v(); t1 = v(); t2 = v()
    sSrc = s(); sSel = s(); sM0 = s(); sRoleL = s(); sRem = s(); sSlotD = s(); sOOB = s(); sStep = s()
    sWq = [s() for _ in range(4)]
    L_wrole = "outg_wrole"; L_roledone = "outg_roledone"
    g.I('s_mov_b32', sOOB, hex(OOB))
    g.I('s_cmp_ge_u32', sW, 4)
    g.I('s_cbranch_scc1', L_wrole)
    g.I('v_lshlrev_b32', vDma, 4, vLane)
    g.I('s_lshl_b32', sTmp, sTm, 2)
    g.I('s_add_u32', sTmp, sTmp, sW)
    g.I('s_lshl_b32', sSrc, sTmp, 18)
    g.I('s_add_u32', sSrc, sSrc, hex(CF_OFF))
    g.I('s_mul_i32', sTmp2, sTmp, 86 * 1024)
    g.I('s_add_u32', sTmp2, sTmp2, hex(HF_OFF))
    g.I('s_cmp_eq_u32', sSp, 3)
    g.I('s_cselect_b32', sSrc, sTmp2, sSrc)
    g.I('s_lshl_b32', sTmp, sK0, 10)
    g.I('s_add_u32', sSrc, sSrc, sTmp)
    g.I('s_lshl_b32', sRoleL, sW, 12)
    g.I('s_mov_b32', sStep, 4096)
    g.I('s_branch', L_roledone)
    g.label(L_wrole)
    g.I('v_lshrrev_b32', vDma, 2, vLane)
    g.I('v_lshlrev_b32', vDma, 10, vDma)
    g.I('v_and_b32', t1, 3, vLane)
    g.I('v_lshlrev_b32', t1, 4, t1)
    g.I('v_add_u32', vDma, vDma, t1)
    g.I('s_sub_u32', sTmp, sW, 4)
    g.I('s_lshl_b32', sSrc, sTn, 7)
    g.I('s_lshl_b32', sTmp2, sTmp, 5)
    g.I('s_add_u32', sSrc, sSrc, sTmp2)
    g.I('s_lshl_b32', sSrc, sSrc, 1)
    g.I('s_lshl_b32', sTmp2, sK0, 14)
    g.I('s_add_u32', sSrc, sSrc, sTmp2)
    g.I('s_lshl_b32', sRoleL, sTmp, 12)
    g.I('s_add_u32', sRoleL, sRoleL, 16384)
    g.I('s_mov_b32', sStep, 65536)
    g.label(L_roledone)
    g.I('s_mov_b32', sRem, sLen)
    g.I('s_mov_b32', sSlotD, 0)

    def dma_stage():
        g.I('s_add_u32', sM0, sSlotD, sRoleL)
        g.I('s_mov_b32', 'm0', sM0)
        for q in range(1, 4):
            g.I('s_add_u32', sWq[q], sSrc, q * (16384 - 1024))
        g.I('s_cmp_ge_u32', sW, 4)
        g.I('s_cselect_b32', sWq[1], sWq[1], sSrc)
        g.I('s_cselect_b32', sWq[2], sWq[2], sSrc)
        g.I('s_cselect_b32', sWq[3], sWq[3], sSrc)
        for q in range(4):
            g.I('s_cmp_gt_i32', sRem, q)
            g.I('s_cselect_b32', sSel, sSrc if q == 0 else sWq[q], sOOB)
            g.buf_load_lds(vDma, srdA_or_W(), sSel, offset=1024 * q)
        g.I('s_add_u32', sSrc, sSrc, sStep)
        g.I('s_sub_u32', sRem, sRem, 4)
        g.I('s_add_u32', sSlotD, sSlotD, STG)
        g.I('s_and_b32', sSlotD, sSlotD, NRING * STG - 1)

    srdD = s(4)
    g.I('s_cmp_ge_u32', sW, 4)
    for k in range(3):
        g.I('s_cselect_b32', srdD[k], srdW[k], srdA[k])
    g.I('s_mov_b32', srdD[3], hex(SRD_FLAGS))
    srdA_or_W = lambda: srdD

    vLP = v(); vAp = v(); vWaddr = v(); vAaddr = v()
    g.I('v_and_b32', t1, 15, vLane)
    g.I('v_lshrrev_b32', t1, 2, t1)
    g.I('v_lshlrev_b32', t2, 2, vH)
    g.I('v_add_u32', t1, t1, t2)
    g.I('v_lshlrev_b32', vLP, 6, t1)
    g.I('v_lshrrev_b32', t1, 4, vLane)
    g.I('v_and_b32', t1, 1, t1)
    g.I('v_lshlrev_b32', t1, 5, t1)
    g.I('v_add_u32', vLP, vLP, t1)
    g.I('v_and_b32', t1, 3, vLane)
    g.I('v_lshlrev_b32', t1, 3, t1)
    g.I('v_add_u32', vLP, vLP, t1)
    g.I('s_lshl_b32', sTmp, sWfh, 13)
    g.I('s_add_u32', sTmp, sTmp, 16384)
    g.I('v_add_u32', vLP, sTmp, vLP)
    g.I('v_lshlrev_b32', vAp, 4, vLane)
    g.I('s_lshl_b32', sTmp, sWt, 12)
    g.I('v_add_u32', vAp, sTmp, vAp)
    acc = [v(16), v(16)]
    wf_ = [[v(4), v(4)] for _ in range(PD + 1)]
    af_ = [v(4) for _ in range(PD + 1)]
    sSlotR = s(); sSt = s()
    g.vm_q = []
    for _ in range(3):
        dma_stage()
    g.I('s_mov_b32', sSlotR, 0)
    g.I('s_mov_b32', sSt, 0)
    for a in acc:
        for r in range(16):
            g.I('v_mov_b32', a[r], 0)

    def issue(ks):
        w = wf_[ks % (PD + 1)]; a = af_[ks % (PD + 1)]
        for ft in range(2):
            g.ds_read('ds_read_b64_tr_b16', w[ft][0:2], vWaddr, offset=4096 * ft + 1024 * ks, tag=('w', ks, ft, 0))
            g.ds_read('ds_read_b64_tr_b16', w[ft][2:4], vWaddr, offset=4096 * ft + 1024 * ks + 512, tag=('w', ks, ft, 1))
        g.ds_read('ds_read_b128', a, vAaddr, offset=1024 * ks, tag=('a', ks))

    L_loop = "outg_loop"
    g.label(L_loop)
    g.I('s_waitcnt', 'vmcnt(8)')
    g.I('s_barrier')
    g.I('v_add_u32', vWaddr, sSlotR, vLP)
    g.I('v_add_u32', vAaddr, sSlotR, vAp)
    for ks in range(PD):
        issue(ks)
    dma_stage()
    for ks in range(4):
        if ks + PD < 4:
            issue(ks + PD)
        g.wait_lds(('a', ks))
        for ft in range(2):
            g.I('v_mfma_f32_32x32x16_bf16', acc[ft], wf_[ks % (PD + 1)][ft], af_[ks % (PD + 1)], acc[ft])
    g.I('s_add_u32', sSlotR, sSlotR, STG)
    g.I('s_and_b32', sSlotR, sSlotR, NRING * STG - 1)
    g.I('s_add_u32', sSt, sSt, 1)
    g.I('s_cmp_lt_u32', sSt, NST)
    g.I('s_cbranch_scc1', L_loop)

    g.I('s_nop', 15)
    sPo = s(); sPo2 = s()
    g.I('s_lshl_b32', sPo, sTm, 2)
    g.I('s_add_u32', sPo, sPo, sTn)
    g.I('s_lshl_b32', sTmp, sSp, 6)
    g.I('s_add_u32', sPo, sPo, sTmp)
    g.I('s_lshl_b32', sPo, sPo, 3)
    g.I('s_add_u32', sPo, sPo, sW)
    g.I('s_lshl_b32', sPo, sPo, 13)
    g.I('s_add_u32', sPo, sPo, hex(PB_OFF))
    g.I('s_add_u32', sPo2, sPo, 4096)
    g.I('v_lshlrev_b32', t1, 4, vLane)
    for ft in range(2):
        for q in range(4):
            g.buf_store('dwordx4', acc[ft][4 * q:4 * q + 4], t1, srdA, sPo if ft == 0 else sPo2, offset=1024 * q)
    g.label(L_end)
    g.I('s_endpgm')
    probs = g.verify_edges()
    assert not probs, probs
    return g, v.hi, s.hi


def gen_red():
    g = Gen()
    v = Alloc('v', 1, 256)
    s = Alloc('s', 3, 102)
    L_end = "red_end"
    g.I('s_cmp_ge_u32', 's2', RED_WGS)
    g.I('s_cbranch_scc1', L_end)
    pX = s(2); pB2 = s(2); pOut = s(2); pWS = s(2)
    g.I('s_load_dwordx2', pX, 's[0:1]', KA_X)
    g.I('s_load_dwordx2', pB2, 's[0:1]', KA_B2)
    g.I('s_load_dwordx2', pOut, 's[0:1]', KA_OUT)
    g.I('s_load_dwordx2', pWS, 's[0:1]', KA_WS)
    sW = s(); sTask = s(); sTmp = s(); sTmp2 = s(); sT = s(); sWv = s(); sIdx = s()
    vT = v(); vLane = v(); vH = v(); vC = v()
    g.I('v_lshrrev_b32', vT, 6, 'v0')
    g.I('v_and_b32', vLane, 63, 'v0')
    g.I('v_readfirstlane_b32', sW, vT)
    g.I('v_lshrrev_b32', vH, 5, vLane)
    g.I('v_and_b32', vC, 31, vLane)
    g.I('s_lshl_b32', sTask, 's2', 2)
    g.I('s_add_u32', sTask, sTask, sW)
    g.I('s_and_b32', sIdx, sTask, 7)
    g.I('s_bfe_u32', sWv, sTask, '0x30003')
    g.I('s_lshr_b32', sT, sTask, 6)
    g.I('s_waitcnt', 'lgkmcnt(0)')
    srdX = s(4); srdB = s(4); srdO = s(4); srdA = s(4)
    make_srd(g, srdX, pX[0], pX[1], S * M * 2)
    make_srd(g, srdB, pB2[0], pB2[1], M * 2)
    make_srd(g, srdO, pOut[0], pOut[1], S * M * 2)
    make_srd(g, srdA, pWS[0], pWS[1], WS_BYTES)
    sP = [s() for _ in range(4)]
    g.I('s_lshl_b32', sP[0], sTask, 10)
    g.I('s_add_u32', sP[0], sP[0], hex(PB_OFF))
    for k in range(1, 4):
        g.I('s_add_u32', sP[k], sP[k - 1], 64 * 8 * 8 * 1024)
    vL16 = v()
    g.I('v_lshlrev_b32', vL16, 4, vLane)
    pr = [v(4) for _ in range(4)]
    for k in range(4):
        g.buf_load('dwordx4', pr[k], vL16, srdA, sP[k], tag=('p', k))
    sEo = s(); sEb = s(); vEo = v(); vEb = v()
    g.I('s_lshr_b32', sTmp, sT, 2)
    g.I('s_lshl_b32', sTmp, sTmp, 7)
    g.I('s_and_b32', sTmp2, sWv, 3)
    g.I('s_lshl_b32', sTmp2, sTmp2, 5)
    g.I('s_add_u32', sEo, sTmp, sTmp2)
    g.I('s_lshl_b32', sEo, sEo, 10)
    g.I('s_and_b32', sEb, sT, 3)
    g.I('s_lshl_b32', sEb, sEb, 7)
    g.I('s_lshr_b32', sTmp, sWv, 2)
    g.I('s_lshl_b32', sTmp, sTmp, 6)
    g.I('s_add_u32', sEb, sEb, sTmp)
    g.I('s_lshl_b32', sTmp, sIdx, 3)
    g.I('s_add_u32', sEb, sEb, sTmp)
    g.I('s_lshl_b32', sEb, sEb, 1)
    g.I('s_add_u32', sEo, sEo, sEb)
    g.I('v_lshlrev_b32', vEo, 10, vC)
    g.I('v_lshlrev_b32', vT, 3, vH)
    g.I('v_add_u32', vEo, vEo, vT)
    g.I('v_mov_b32', vEb, vT)
    xr = v(2); br = v(2)
    g.buf_load('dwordx2', xr, vEo, srdX, sEo, tag='x')
    g.buf_load('dwordx2', br, vEb, srdB, sEb, tag='b')
    g.wait_vm(('p', 1))
    for r in range(4):
        g.I('v_add_f32', pr[0][r], pr[0][r], pr[1][r])
    g.wait_vm(('p', 2))
    for r in range(4):
        g.I('v_add_f32', pr[0][r], pr[0][r], pr[2][r])
    g.wait_vm(('p', 3))
    for r in range(4):
        g.I('v_add_f32', pr[0][r], pr[0][r], pr[3][r])
    g.wait_vm('b')
    tf = v(4)
    for half in range(2):
        g.I('v_lshlrev_b32', tf[0], 16, xr[half])
        g.I('v_and_b32', tf[1], '0xffff0000', xr[half])
        g.I('v_lshlrev_b32', tf[2], 16, br[half])
        g.I('v_and_b32', tf[3], '0xffff0000', br[half])
        g.I('v_add_f32', tf[0], tf[0], tf[2])
        g.I('v_add_f32', tf[1], tf[1], tf[3])
        g.I('v_add_f32', pr[0][2 * half], pr[0][2 * half], tf[0])
        g.I('v_add_f32', pr[0][2 * half + 1], pr[0][2 * half + 1], tf[1])
    pk = v(2)
    for half in range(2):
        g.I('v_cvt_pk_bf16_f32', pk[half], pr[0][2 * half], pr[0][2 * half + 1])
    g.buf_store('dwordx2', pk, vEo, srdO, sEo)
    g.label(L_end)
    g.I('s_endpgm')
    probs = g.verify_edges()
    assert not probs, probs
    return g, v.hi, s.hi
```

```python
import math
from common import *

PROJ_NAME = "proj_kernel"
PROJ_WGS = 256
RING = 4
SLOT = 32768
BIAS_LDS = RING * SLOT
PROJ_LDS = RING * SLOT + 1024
DEPTH = 8
OOB = 0x40000000

LOG2E = 1.4426950408889634
GELU_C1 = -2.0 * 0.7978845608028654 * LOG2E
GELU_C2 = GELU_C1 * 0.044715


STAMP = False
MAP_TB_XCD = False
STAMP2 = False
STAMP_OFF = 76 * MB


def gen_proj():
    g = Gen()
    v = Alloc('v', 1, 256)
    s = Alloc('s', 3, 102)
    L_end = "proj_end"
    g.I('s_cmp_ge_u32', 's2', PROJ_WGS)
    g.I('s_cbranch_scc1', L_end)

    pA = s(8)
    pW1 = s(2); pB1 = s(2); pWS = s(2)
    g.I('s_load_dwordx8', pA, 's[0:1]', KA_CKV)
    g.I('s_load_dwordx4', Reg('s', pW1.base, 4), 's[0:1]', KA_W1) if pB1.base == pW1.base + 2 and pW1.base % 4 == 0 else (
        g.I('s_load_dwordx2', pW1, 's[0:1]', KA_W1), g.I('s_load_dwordx2', pB1, 's[0:1]', KA_B1))
    g.I('s_load_dwordx2', pWS, 's[0:1]', KA_WS)

    sW = s()
    vT = v(); vLane = v(); vH = v(); vC = v()
    g.I('v_lshrrev_b32', vT, 6, 'v0')
    g.I('v_and_b32', vLane, 63, 'v0')
    g.I('v_readfirstlane_b32', sW, vT)
    g.I('v_lshrrev_b32', vH, 5, vLane)
    g.I('v_and_b32', vC, 31, vLane)

    sTb = s(); sCh = s(); sTmp = s(); sTmp2 = s(); sType = s(); sCc = s(); sStart = s(); sCnt = s()
    if MAP_TB_XCD:
        g.I('s_and_b32', sTb, 's2', 7)
        g.I('s_lshr_b32', sCh, 's2', 3)
    else:
        g.I('s_lshr_b32', sTmp, 's2', 3)
        g.I('s_and_b32', sTb, sTmp, 7)
        g.I('s_lshr_b32', sTmp, sTmp, 3)
        g.I('s_lshl_b32', sTmp, sTmp, 3)
        g.I('s_and_b32', sCh, 's2', 7)
        g.I('s_add_u32', sCh, sCh, sTmp)
    g.I('s_mov_b32', sType, 0)
    g.I('s_mov_b32', sCc, sCh)
    for k in range(3):
        g.I('s_cmp_ge_u32', sCh, 9 * (k + 1))
        g.I('s_cselect_b32', sTmp, 1, 0)
        g.I('s_add_u32', sType, sType, sTmp)
        g.I('s_cselect_b32', sTmp, 9, 0) if False else None
    g.I('s_mul_i32', sTmp, sType, 9)
    g.I('s_sub_u32', sCc, sCh, sTmp)
    g.I('s_mul_i32', sStart, sCc, 14)
    g.I('s_min_u32', sTmp, sCc, 2)
    g.I('s_add_u32', sStart, sStart, sTmp)
    g.I('s_cmp_lt_u32', sCc, 2)
    g.I('s_cselect_b32', sCnt, 15, 14)
    g.I('s_mul_i32', sTmp, sCc, 9)
    g.I('s_sub_u32', sTmp2, sCc, 3)
    g.I('s_cmp_ge_u32', sCc, 3)
    g.I('s_cselect_b32', sTmp2, sTmp2, 0)
    g.I('s_sub_u32', sTmp, sTmp, sTmp2)
    g.I('s_cmp_ge_u32', sCc, 3)
    g.I('s_cselect_b32', sTmp2, 8, 9)
    g.I('s_cmp_eq_u32', sType, 3)
    g.I('s_cselect_b32', sStart, sTmp, sStart)
    g.I('s_cselect_b32', sCnt, sTmp2, sCnt)

    g.I('s_waitcnt', 'lgkmcnt(0)')
    g.lds_q = []

    srdX = s(4); srdW = s(4); srdO = s(4); srdB = s(4)
    sXsel = s()
    g.I('s_cmp_eq_u32', sType, 0)
    g.I('s_cselect_b32', sTmp, 1, 0)
    g.I('s_cmp_eq_u32', sType, 3)
    g.I('s_cselect_b32', sTmp2, 1, 0)
    g.I('s_or_b32', sTmp, sTmp, sTmp2)
    g.I('s_mov_b32', sXsel, hex(XN_OFF))
    g.I('s_cmp_eq_u32', sTmp, 1)
    g.I('s_cselect_b32', sXsel, sXsel, hex(CK_OFF))
    g.I('s_cmp_eq_u32', sType, 0)
    g.I('s_cselect_b32', srdW[0], pA[2], pA[4])
    g.I('s_cselect_b32', srdW[1], pA[3], pA[5])
    g.I('s_cmp_eq_u32', sType, 2)
    g.I('s_cselect_b32', srdW[0], pA[6], srdW[0])
    g.I('s_cselect_b32', srdW[1], pA[7], srdW[1])
    g.I('s_cmp_eq_u32', sType, 3)
    g.I('s_cselect_b32', srdW[0], pW1[0], srdW[0])
    g.I('s_cselect_b32', srdW[1], pW1[1], srdW[1])
    g.I('s_mov_b32', sTmp, hex(M * F * 2))
    g.I('s_cselect_b32', srdW[2], sTmp, hex(M * 4096 * 2))
    g.I('s_mov_b32', srdW[3], hex(SRD_FLAGS))
    make_srd(g, srdO, pWS[0], pWS[1], WS_BYTES)
    make_srd(g, srdB, pB1[0], pB1[1], F * 2)

    vXoff = v()
    t1 = v()
    g.I('v_lshlrev_b32', vXoff, 4, vLane)
    vLanePart = v()
    t2 = v()
    g.I('v_and_b32', t1, 15, vLane)
    g.I('v_lshrrev_b32', t1, 2, t1)
    g.I('v_lshlrev_b32', t2, 3, vH)
    g.I('v_add_u32', t1, t1, t2)
    g.I('v_lshlrev_b32', vLanePart, 6, t1)
    g.I('v_lshrrev_b32', t1, 4, vLane)
    g.I('v_and_b32', t1, 1, t1)
    g.I('v_lshlrev_b32', t1, 5, t1)
    g.I('v_add_u32', vLanePart, vLanePart, t1)
    g.I('v_and_b32', t1, 3, vLane)
    g.I('v_lshlrev_b32', t1, 3, t1)
    g.I('v_add_u32', vLanePart, vLanePart, t1)

    X = v(128)
    accA = v(16); accB = v(16)
    ring = [v(4) for _ in range(DEPTH)]
    pk = v(8)
    vTr = [v(), v()]
    vDma = v(); vOut = v()
    vBblk = v(4); vOnes = v(4); vBaddr = v(); vC1 = v()
    gt = [v() for _ in range(4)]

    sDmaCol = s(); sDmaRem = s(); sSlotDma = s(); sSlotRd = s(); sIter = s(); sNt = s(); sOutBase = s()
    sQ = [s() for _ in range(4)]
    sSel = s(); sM0 = s(); sW4096 = s(); sEpi = s(); sEpi2 = s(); sC2 = s(); sOOB = s()
    g.I('s_mov_b32', sOOB, hex(OOB))
    g.I('s_lshl_b32', sW4096, sW, 12)

    sStamp = s(2); sStampOff = s(); vStamp = v(); vStampA = v()
    if STAMP:
        g.I('s_lshl_b32', sStampOff, 's2', 8)
        g.I('s_add_u32', sStampOff, sStampOff, hex(STAMP_OFF))
        g.I('v_mov_b32', vStampA, 0)

    def stamp():
        if not STAMP:
            return
        Ls = g.newlabel("pstamp")
        g.I('s_cmp_lg_u32', sW, 0)
        g.I('s_cbranch_scc1', Ls)
        g.I('s_memtime', sStamp)
        g.I('s_waitcnt', 'lgkmcnt(0)')
        g.I('v_mov_b32', vStamp, sStamp[0])
        g.I('buffer_store_dword', vStamp, vStampA, srdO, sStampOff, mods="offen")
        g.I('s_add_u32', sStampOff, sStampOff, 4)
        g.label(Ls)
        g.I('s_nop', 7)

    def body(kind):
        pitch = F * 2 if kind == 'f' else 4096 * 2
        Lloop = f"proj_{kind}_loop"; LendA = f"proj_{kind}_endA"; LendB = f"proj_{kind}_endB"
        g.I('v_lshrrev_b32', t1, 2, vLane)
        g.I('s_mov_b32', sTmp, pitch)
        g.I('v_mul_lo_u32', vDma, t1, sTmp)
        g.I('v_and_b32', t1, 3, vLane)
        g.I('v_lshlrev_b32', t1, 4, t1)
        g.I('v_add_u32', vDma, vDma, t1)
        g.I('s_lshl_b32', sTmp, sTb, 3)
        g.I('s_add_u32', sTmp, sTmp, sW)
        g.I('s_mul_i32', sTmp, sTmp, 88064 if kind == 'f' else 8192)
        g.I('v_lshlrev_b32', vOut, 4, vLane)
        g.I('v_add_u32', vOut, sTmp, vOut)
        g.I('s_mul_i32', sDmaCol, sW, 64 * pitch)
        g.I('s_lshl_b32', sTmp, sStart, 6)
        g.I('s_add_u32', sDmaCol, sDmaCol, sTmp)
        g.I('s_mov_b32', sDmaRem, sCnt)
        g.I('s_mov_b32', sSlotDma, 0)
        g.I('s_mov_b32', sSlotRd, 0)
        g.I('s_mov_b32', sNt, sStart)
        if kind == 'qk':
            g.I('s_cmp_eq_u32', sType, 0)
            g.I('s_cselect_b32', sOutBase, hex(QF_OFF) if QF_OFF else 0, hex(KF_OFF))
        elif kind == 'v':
            g.I('s_mov_b32', sOutBase, hex(VF_OFF))
        else:
            g.I('s_mov_b32', sOutBase, hex(HF_OFF))

        def dma_tile():
            g.I('s_cmp_gt_i32', sDmaRem, 0)
            g.I('s_cselect_b32', sSel, sDmaCol, sOOB)
            g.I('s_sub_u32', sDmaRem, sDmaRem, 1)
            g.I('s_add_u32', sM0, sSlotDma, sW4096)
            g.I('s_mov_b32', 'm0', sM0)
            for q in range(1, 4):
                g.I('s_add_u32', sQ[q], sSel, q * (16 * pitch - 1024))
            for q in range(4):
                g.buf_load_lds(vDma, srdW, sSel if q == 0 else sQ[q], offset=1024 * q, tag='dma')
            g.I('s_add_u32', sDmaCol, sDmaCol, 64)
            g.I('s_add_u32', sSlotDma, sSlotDma, SLOT)
            g.I('s_and_b32', sSlotDma, sSlotDma, RING * SLOT - 1)

        if kind == 'f':
            Lnb = g.newlabel("proj_nb")
            g.I('s_cmp_lg_u32', sW, 0)
            g.I('s_cbranch_scc1', Lnb)
            g.I('s_mov_b32', 'm0', BIAS_LDS)
            g.I('s_lshl_b32', sTmp, sStart, 6)
            g.I('v_lshlrev_b32', t1, 4, vLane)
            g.buf_load_lds(t1, srdB, sTmp, tag='bias')
            g.label(Lnb)
            for k in range(1, 4):
                g.I('v_mov_b32', vBblk[k], 0)
                g.I('v_mov_b32', vOnes[k], 0)
            g.I('v_cmp_gt_u32', 'vcc', 32, vLane)
            g.I('v_mov_b32', t1, 0)
            g.I('v_mov_b32', t2, '0x3f80')
            g.I('v_cndmask_b32', vOnes[0], t1, t2, 'vcc')
            g.I('v_lshlrev_b32', vBaddr, 1, vC)
            g.I('v_add_u32', vBaddr, BIAS_LDS, vBaddr)
            g.I('v_mov_b32', vC1, hex(f32bits(GELU_C1)))
            g.I('s_mov_b32', sC2, hex(f32bits(GELU_C2)))

        stamp()
        for _ in range(3):
            dma_tile()
        if STAMP2:
            g.wait_vm_all()
            stamp()
        g.I('s_lshl_b32', sTmp, sTb, 3)
        g.I('s_add_u32', sTmp, sTmp, sW)
        g.I('s_lshl_b32', sTmp, sTmp, 15)
        g.I('s_add_u32', sTmp, sTmp, sXsel)
        for k in range(32):
            if k % 4 == 0 and k:
                g.I('s_add_u32', sTmp, sTmp, 4096)
            g.buf_load('dwordx4', X[4 * k:4 * k + 4], vXoff, srdO, sTmp, offset=1024 * (k % 4), tag='x')
        if STAMP2:
            stamp()
        g.I('s_waitcnt', 'vmcnt(32)')
        g.I('s_barrier')
        stamp()
        g.I('v_mov_b32', vTr[0], vLanePart)
        g.I('v_add_u32', vTr[1], SLOT, vLanePart)
        g.I('s_mov_b32', sSlotRd, SLOT)

        def issue_frag(f, base, tagp):
            r = ring[f % DEPTH]
            g.ds_read('ds_read_b64_tr_b16', r[0:2], base, offset=1024 * f, tag=(tagp, f, 0))
            g.ds_read('ds_read_b64_tr_b16', r[2:4], base, offset=1024 * f + 256, tag=(tagp, f, 1))

        def epilogue_ops(acc):
            ops = []
            def addr():
                if kind == 'f':
                    g.I('s_lshl_b32', sEpi, sNt, 11)
                    g.I('s_add_u32', sEpi, sEpi, sOutBase)
                else:
                    g.I('s_lshr_b32', sEpi, sNt, 2)
                    g.I('s_lshl_b32', sEpi, sEpi, 19)
                    g.I('s_and_b32', sEpi2, sNt, 3)
                    g.I('s_lshl_b32', sEpi2, sEpi2, 11 if kind == 'qk' else 10)
                    g.I('s_add_u32', sEpi, sEpi, sEpi2)
                    g.I('s_add_u32', sEpi, sEpi, sOutBase)
                    if kind == 'v':
                        g.I('s_add_u32', sEpi2, sEpi, 4096)
                g.I('s_add_u32', sNt, sNt, 1)
            ops.append(addr)
            if kind == 'f':
                for e0 in range(0, 16, 4):
                    es = list(range(e0, e0 + 4))
                    ops.append(lambda es=es: [g.I('v_mul_f32', gt[i], acc[e], acc[e]) for i, e in enumerate(es)])
                    ops.append(lambda es=es: [g.I('v_fma_f32', gt[i], gt[i], sC2, vC1) for i, e in enumerate(es)])
                    ops.append(lambda es=es: [g.I('v_mul_f32', gt[i], gt[i], acc[e]) for i, e in enumerate(es)])
                    ops.append(lambda es=es: [g.I('v_exp_f32', gt[i], gt[i]) for i, e in enumerate(es)])
                    ops.append(lambda es=es: [g.I('v_add_f32', gt[i], 1.0, gt[i]) for i, e in enumerate(es)])
                    ops.append(lambda es=es: [g.I('v_rcp_f32', gt[i], gt[i]) for i, e in enumerate(es)])
                    ops.append(lambda es=es: [g.I('v_mul_f32', acc[e], acc[e], gt[i]) for i, e in enumerate(es)])
            for k in range(8):
                ops.append(lambda k=k: g.I('v_cvt_pk_bf16_f32', pk[k], acc[2 * k], acc[2 * k + 1]))
            if kind == 'v':
                ops.append(lambda: g.buf_store('dwordx4', pk[0:4], vOut, srdO, sEpi, tag='st'))
                ops.append(lambda: g.buf_store('dwordx4', pk[4:8], vOut, srdO, sEpi2, tag='st'))
            else:
                ops.append(lambda: g.buf_store('dwordx4', pk[0:4], vOut, srdO, sEpi, tag='st'))
                ops.append(lambda: g.buf_store('dwordx4', pk[4:8], vOut, srdO, sEpi, offset=1024, tag='st'))
            return ops

        def iteration(acc, prev, bC, bN, first):
            if not first:
                g.wait_vm_n(6)
                g.I('s_barrier')
                stamp()
            dma_tile()
            fill = [] if first else epilogue_ops(prev)
            fi = 0
            per = max(1, math.ceil(len(fill) / 28)) if fill else 0
            if kind == 'f':
                g.ds_read('ds_read_u16', vBblk[0], vBaddr, tag='b')
                g.I('v_add_u32', vBaddr, 64, vBaddr)
            for st in range(32):
                f = st + DEPTH - 1
                if f < 32:
                    issue_frag(f, bC, 'c')
                else:
                    issue_frag(f - 32, bN, 'n')
                g.wait_lds(('c', st, 1))
                if first:
                    g.I('s_waitcnt', f"vmcnt({35 - st})")
                w = ring[st % DEPTH]
                xs = X[4 * st:4 * st + 4]
                c = 0 if st == 0 else acc
                if kind == 'v':
                    g.I('v_mfma_f32_32x32x16_bf16', acc, xs, w, c)
                else:
                    g.I('v_mfma_f32_32x32x16_bf16', acc, w, xs, c)
                if st >= 2:
                    for _ in range(per):
                        if fi < len(fill):
                            fill[fi](); fi += 1
            while fi < len(fill):
                fill[fi](); fi += 1
            if kind == 'f':
                g.wait_lds('b')
                g.I('v_mfma_f32_32x32x16_bf16', acc, vBblk, vOnes, acc)
            g.lds_q = [('c',) + t[1:] if (isinstance(t, tuple) and t[0] == 'n') else t for t in g.lds_q]
            g.I('s_add_u32', sSlotRd, sSlotRd, SLOT)
            g.I('s_and_b32', sSlotRd, sSlotRd, RING * SLOT - 1)
            g.I('v_add_u32', bC, sSlotRd, vLanePart)

        def final_epilogue(acc):
            stamp()
            g.I('s_nop', 15)
            for op in epilogue_ops(acc):
                op()
            g.wait_vm_all()
            stamp()

        for f in range(DEPTH - 1):
            issue_frag(f, vTr[0], 'c')
        q0 = list(g.lds_q)
        iteration(accA, None, vTr[0], vTr[1], True)
        assert g.lds_q == q0, (g.lds_q, q0)
        g.I('s_sub_u32', sIter, sCnt, 1)
        g.label(Lloop)
        iteration(accB, accA, vTr[1], vTr[0], False)
        assert g.lds_q == q0
        g.I('s_sub_u32', sIter, sIter, 1)
        g.I('s_cmp_eq_u32', sIter, 0)
        g.I('s_cbranch_scc1', LendB)
        iteration(accA, accB, vTr[0], vTr[1], False)
        assert g.lds_q == q0
        g.I('s_sub_u32', sIter, sIter, 1)
        g.I('s_cmp_lg_u32', sIter, 0)
        g.I('s_cbranch_scc1', Lloop)
        g.label(LendA)
        final_epilogue(accA)
        g.I('s_branch', L_end)
        g.label(LendB)
        final_epilogue(accB)
        g.I('s_branch', L_end)

    Lv = "proj_type_v"; Lf = "proj_type_f"
    g.I('s_cmp_eq_u32', sType, 2)
    g.I('s_cbranch_scc1', Lv)
    g.I('s_cmp_eq_u32', sType, 3)
    g.I('s_cbranch_scc1', Lf)
    save = (list(g.lds_q), list(g.vm_q))
    body('qk')
    g.label(Lv)
    g.lds_q, g.vm_q = list(save[0]), list(save[1])
    body('v')
    g.label(Lf)
    g.lds_q, g.vm_q = list(save[0]), list(save[1])
    body('f')
    g.label(L_end)
    g.I('s_endpgm')
    probs = g.verify_edges()
    assert not probs, probs
    return g, v.hi, s.hi
```

```python
import sys, os
sys.path.insert(0, os.path.dirname(os.path.abspath(__file__)))
from common import *
import k_ln

REF = "parallel_sum__compressed_kv_cla__dense_activation_gelu__prompt.s.ref"

def header(launches):
    lines = []
    for l in open(REF).read().splitlines():
        if not l.startswith(';'):
            break
        if '@launch' in l:
            continue
        lines.append(l)
    for (name, grid, block, lds) in launches:
        lines.append(f"; @launch kernel={name} grid=({grid},1,1) block=({block},1,1) lds={lds}")
    return "\n".join(lines) + "\n" + '.amdgcn_target "amdgcn-amd-amdhsa--gfx950"\n'

def build(which=("ln","proj","attn","out2"), out_path=None):
    launches = []; bodies = []
    if "ln" in which:
        g, nv, ns = k_ln.gen_ln()
        launches.append((k_ln.LN_NAME, k_ln.LN_WGS, 256, 0)); bodies.append(kernel_text(k_ln.LN_NAME, g, nv, ns))
    if "proj" in which:
        import k_proj
        g, nv, ns = k_proj.gen_proj()
        launches.append((k_proj.PROJ_NAME, k_proj.PROJ_WGS, 512, k_proj.PROJ_LDS)); bodies.append(kernel_text(k_proj.PROJ_NAME, g, nv, ns))
    if "attn" in which:
        import k_attn
        g, nv, ns, probs = k_attn.gen_attn()
        for p in probs: print('EDGE PROBLEM', p)
        launches.append((k_attn.ATTN_NAME, k_attn.ATTN_WGS, 512, k_attn.ATTN_LDS)); bodies.append(kernel_text(k_attn.ATTN_NAME, g, nv, ns))
    if "out" in which:
        import k_out
        g, nv, ns = k_out.gen_out()
        launches.append((k_out.OUT_NAME, k_out.OUT_WGS, k_out.OUT_THREADS, k_out.OUT_LDS)); bodies.append(kernel_text(k_out.OUT_NAME, g, nv, ns))
    if "out2" in which:
        import k_out2
        g, nv, ns = k_out2.gen_outg()
        launches.append((k_out2.OUTG_NAME, k_out2.OUTG_WGS, 512, k_out2.OUTG_LDS)); bodies.append(kernel_text(k_out2.OUTG_NAME, g, nv, ns))
        g, nv, ns = k_out2.gen_red()
        launches.append((k_out2.RED_NAME, k_out2.RED_WGS, 256, 0)); bodies.append(kernel_text(k_out2.RED_NAME, g, nv, ns))
    txt = header(launches) + "\n".join(bodies)
    if out_path:
        open(out_path, "w").write(txt)
    return txt

if __name__ == "__main__":
    which = sys.argv[2].split(",") if len(sys.argv) > 2 else ("ln","proj","attn","out2")
    out = sys.argv[1] if len(sys.argv) > 1 else "out.s"
    build(which, out)
    print("wrote", out, os.path.getsize(out))
```

```python
import math
from common import *

PROJ_NAME = "proj_kernel"
PROJ_WGS = 256
RING = 4
SLOT = 32768
BIAS_LDS = RING * SLOT
PROJ_LDS = RING * SLOT + 1024
DEPTH = 8
OOB = 0x40000000

LOG2E = 1.4426950408889634
GELU_C1 = -2.0 * 0.7978845608028654 * LOG2E
GELU_C2 = GELU_C1 * 0.044715


STAMP = False
MAP_TB_XCD = False
STAMP2 = False
STAMP_OFF = 76 * MB


def gen_proj():
    g = Gen()
    v = Alloc('v', 1, 256)
    s = Alloc('s', 3, 102)
    L_end = "proj_end"
    g.I('s_cmp_ge_u32', 's2', PROJ_WGS)
    g.I('s_cbranch_scc1', L_end)

    pA = s(8)
    pW1 = s(2); pB1 = s(2); pWS = s(2)
    g.I('s_load_dwordx8', pA, 's[0:1]', KA_CKV)
    g.I('s_load_dwordx4', Reg('s', pW1.base, 4), 's[0:1]', KA_W1) if pB1.base == pW1.base + 2 and pW1.base % 4 == 0 else (
        g.I('s_load_dwordx2', pW1, 's[0:1]', KA_W1), g.I('s_load_dwordx2', pB1, 's[0:1]', KA_B1))
    g.I('s_load_dwordx2', pWS, 's[0:1]', KA_WS)

    sW = s()
    vT = v(); vLane = v(); vH = v(); vC = v()
    g.I('v_lshrrev_b32', vT, 6, 'v0')
    g.I('v_and_b32', vLane, 63, 'v0')
    g.I('v_readfirstlane_b32', sW, vT)
    g.I('v_lshrrev_b32', vH, 5, vLane)
    g.I('v_and_b32', vC, 31, vLane)

    sTb = s(); sCh = s(); sTmp = s(); sTmp2 = s(); sType = s(); sCc = s(); sStart = s(); sCnt = s()
    if MAP_TB_XCD:
        g.I('s_and_b32', sTb, 's2', 7)
        g.I('s_lshr_b32', sCh, 's2', 3)
    else:
        g.I('s_lshr_b32', sTmp, 's2', 3)
        g.I('s_and_b32', sTb, sTmp, 7)
        g.I('s_lshr_b32', sTmp, sTmp, 3)
        g.I('s_lshl_b32', sTmp, sTmp, 3)
        g.I('s_and_b32', sCh, 's2', 7)
        g.I('s_add_u32', sCh, sCh, sTmp)
    g.I('s_mov_b32', sType, 0)
    g.I('s_mov_b32', sCc, sCh)
    for k in range(3):
        g.I('s_cmp_ge_u32', sCh, 9 * (k + 1))
        g.I('s_cselect_b32', sTmp, 1, 0)
        g.I('s_add_u32', sType, sType, sTmp)
        g.I('s_cselect_b32', sTmp, 9, 0) if False else None
    g.I('s_mul_i32', sTmp, sType, 9)
    g.I('s_sub_u32', sCc, sCh, sTmp)
    g.I('s_mul_i32', sStart, sCc, 14)
    g.I('s_min_u32', sTmp, sCc, 2)
    g.I('s_add_u32', sStart, sStart, sTmp)
    g.I('s_cmp_lt_u32', sCc, 2)
    g.I('s_cselect_b32', sCnt, 15, 14)
    g.I('s_mul_i32', sTmp, sCc, 9)
    g.I('s_sub_u32', sTmp2, sCc, 3)
    g.I('s_cmp_ge_u32', sCc, 3)
    g.I('s_cselect_b32', sTmp2, sTmp2, 0)
    g.I('s_sub_u32', sTmp, sTmp, sTmp2)
    g.I('s_cmp_ge_u32', sCc, 3)
    g.I('s_cselect_b32', sTmp2, 8, 9)
    g.I('s_cmp_eq_u32', sType, 3)
    g.I('s_cselect_b32', sStart, sTmp, sStart)
    g.I('s_cselect_b32', sCnt, sTmp2, sCnt)

    g.I('s_waitcnt', 'lgkmcnt(0)')
    g.lds_q = []

    srdX = s(4); srdW = s(4); srdO = s(4); srdB = s(4)
    sXsel = s()
    g.I('s_cmp_eq_u32', sType, 0)
    g.I('s_cselect_b32', sTmp, 1, 0)
    g.I('s_cmp_eq_u32', sType, 3)
    g.I('s_cselect_b32', sTmp2, 1, 0)
    g.I('s_or_b32', sTmp, sTmp, sTmp2)
    g.I('s_mov_b32', sXsel, hex(XN_OFF))
    g.I('s_cmp_eq_u32', sTmp, 1)
    g.I('s_cselect_b32', sXsel, sXsel, hex(CK_OFF))
    g.I('s_cmp_eq_u32', sType, 0)
    g.I('s_cselect_b32', srdW[0], pA[2], pA[4])
    g.I('s_cselect_b32', srdW[1], pA[3], pA[5])
    g.I('s_cmp_eq_u32', sType, 2)
    g.I('s_cselect_b32', srdW[0], pA[6], srdW[0])
    g.I('s_cselect_b32', srdW[1], pA[7], srdW[1])
    g.I('s_cmp_eq_u32', sType, 3)
    g.I('s_cselect_b32', srdW[0], pW1[0], srdW[0])
    g.I('s_cselect_b32', srdW[1], pW1[1], srdW[1])
    g.I('s_mov_b32', sTmp, hex(M * F * 2))
    g.I('s_cselect_b32', srdW[2], sTmp, hex(M * 4096 * 2))
    g.I('s_mov_b32', srdW[3], hex(SRD_FLAGS))
    make_srd(g, srdO, pWS[0], pWS[1], WS_BYTES)
    make_srd(g, srdB, pB1[0], pB1[1], F * 2)

    vXoff = v()
    t1 = v()
    g.I('v_lshlrev_b32', vXoff, 4, vLane)
    vLanePart = v()
    t2 = v()
    g.I('v_and_b32', t1, 15, vLane)
    g.I('v_lshrrev_b32', t1, 2, t1)
    g.I('v_lshlrev_b32', t2, 3, vH)
    g.I('v_add_u32', t1, t1, t2)
    g.I('v_lshlrev_b32', vLanePart, 6, t1)
    g.I('v_lshrrev_b32', t1, 4, vLane)
    g.I('v_and_b32', t1, 1, t1)
    g.I('v_lshlrev_b32', t1, 5, t1)
    g.I('v_add_u32', vLanePart, vLanePart, t1)
    g.I('v_and_b32', t1, 3, vLane)
    g.I('v_lshlrev_b32', t1, 3, t1)
    g.I('v_add_u32', vLanePart, vLanePart, t1)

    X = v(128)
    accA = v(16); accB = v(16)
    ring = [v(4) for _ in range(DEPTH)]
    pk = v(8)
    vTr = [v(), v()]
    vDma = v(); vOut = v()
    vBblk = v(4); vOnes = v(4); vBaddr = v(); vC1 = v()
    gt = [v() for _ in range(4)]

    sDmaCol = s(); sDmaRem = s(); sSlotDma = s(); sSlotRd = s(); sIter = s(); sNt = s(); sOutBase = s()
    sQ = [s() for _ in range(4)]
    sXb = s(); sSel = s(); sM0 = s(); sW4096 = s(); sEpi = s(); sEpi2 = s(); sC2 = s(); sOOB = s()
    g.I('s_mov_b32', sOOB, hex(OOB))
    g.I('s_lshl_b32', sW4096, sW, 12)

    sStamp = s(2); sStampOff = s(); vStamp = v(); vStampA = v()
    if STAMP:
        g.I('s_lshl_b32', sStampOff, 's2', 8)
        g.I('s_add_u32', sStampOff, sStampOff, hex(STAMP_OFF))
        g.I('v_mov_b32', vStampA, 0)

    def stamp():
        if not STAMP:
            return
        Ls = g.newlabel("pstamp")
        g.I('s_cmp_lg_u32', sW, 0)
        g.I('s_cbranch_scc1', Ls)
        g.I('s_memtime', sStamp)
        g.I('s_waitcnt', 'lgkmcnt(0)')
        g.I('v_mov_b32', vStamp, sStamp[0])
        g.I('buffer_store_dword', vStamp, vStampA, srdO, sStampOff, mods="offen")
        g.I('s_add_u32', sStampOff, sStampOff, 4)
        g.label(Ls)
        g.I('s_nop', 7)

    def body(kind):
        pitch = F * 2 if kind == 'f' else 4096 * 2
        Lloop = f"proj_{kind}_loop"; LendA = f"proj_{kind}_endA"; LendB = f"proj_{kind}_endB"
        g.I('v_lshrrev_b32', t1, 2, vLane)
        g.I('s_mov_b32', sTmp, pitch)
        g.I('v_mul_lo_u32', vDma, t1, sTmp)
        g.I('v_and_b32', t1, 3, vLane)
        g.I('v_lshlrev_b32', t1, 4, t1)
        g.I('v_add_u32', vDma, vDma, t1)
        g.I('s_lshl_b32', sTmp, sTb, 3)
        g.I('s_add_u32', sTmp, sTmp, sW)
        g.I('s_mul_i32', sTmp, sTmp, 88064 if kind == 'f' else 8192)
        g.I('v_lshlrev_b32', vOut, 4, vLane)
        g.I('v_add_u32', vOut, sTmp, vOut)
        g.I('s_mul_i32', sDmaCol, sW, 64 * pitch)
        g.I('s_lshl_b32', sTmp, sStart, 6)
        g.I('s_add_u32', sDmaCol, sDmaCol, sTmp)
        g.I('s_mov_b32', sDmaRem, sCnt)
        g.I('s_mov_b32', sSlotDma, 0)
        g.I('s_mov_b32', sSlotRd, 0)
        g.I('s_mov_b32', sNt, sStart)
        if kind == 'qk':
            g.I('s_cmp_eq_u32', sType, 0)
            g.I('s_cselect_b32', sOutBase, hex(QF_OFF) if QF_OFF else 0, hex(KF_OFF))
        elif kind == 'v':
            g.I('s_mov_b32', sOutBase, hex(VF_OFF))
        else:
            g.I('s_mov_b32', sOutBase, hex(HF_OFF))

        def dma_tile(spread=False):
            g.I('s_cmp_gt_i32', sDmaRem, 0)
            g.I('s_cselect_b32', sSel, sDmaCol, sOOB)
            g.I('s_sub_u32', sDmaRem, sDmaRem, 1)
            g.I('s_add_u32', sM0, sSlotDma, sW4096)
            g.I('s_mov_b32', 'm0', sM0)
            for q in range(1, 4):
                g.I('s_add_u32', sQ[q], sSel, q * (16 * pitch - 1024))
            loads = [lambda q=q: g.buf_load_lds(vDma, srdW, sSel if q == 0 else sQ[q], offset=1024 * q, tag='dma')
                     for q in range(4)]
            g.I('s_add_u32', sDmaCol, sDmaCol, 64)
            g.I('s_add_u32', sSlotDma, sSlotDma, SLOT)
            g.I('s_and_b32', sSlotDma, sSlotDma, RING * SLOT - 1)
            if spread:
                return loads
            for l in loads:
                l()
            return []

        if kind == 'f':
            Lnb = g.newlabel("proj_nb")
            g.I('s_cmp_lg_u32', sW, 0)
            g.I('s_cbranch_scc1', Lnb)
            g.I('s_mov_b32', 'm0', BIAS_LDS)
            g.I('s_lshl_b32', sTmp, sStart, 6)
            g.I('v_lshlrev_b32', t1, 4, vLane)
            g.buf_load_lds(t1, srdB, sTmp, tag='bias')
            g.label(Lnb)
            for k in range(1, 4):
                g.I('v_mov_b32', vBblk[k], 0)
                g.I('v_mov_b32', vOnes[k], 0)
            g.I('v_cmp_gt_u32', 'vcc', 32, vLane)
            g.I('v_mov_b32', t1, 0)
            g.I('v_mov_b32', t2, '0x3f80')
            g.I('v_cndmask_b32', vOnes[0], t1, t2, 'vcc')
            g.I('v_lshlrev_b32', vBaddr, 1, vC)
            g.I('v_add_u32', vBaddr, BIAS_LDS, vBaddr)
            g.I('v_mov_b32', vC1, hex(f32bits(GELU_C1)))
            g.I('s_mov_b32', sC2, hex(f32bits(GELU_C2)))

        stamp()
        for _ in range(3):
            dma_tile()
        if STAMP2:
            g.wait_vm_all()
            stamp()
        g.I('s_lshl_b32', sTmp, sTb, 3)
        g.I('s_add_u32', sTmp, sTmp, sW)
        g.I('s_lshl_b32', sTmp, sTmp, 15)
        g.I('s_add_u32', sTmp, sTmp, sXsel)
        g.I('s_mov_b32', sXb, sTmp)

        def xload(k):
            if k % 4 == 0 and k:
                g.I('s_add_u32', sXb, sXb, 4096)
            g.buf_load('dwordx4', X[4 * k:4 * k + 4], vXoff, srdO, sXb, offset=1024 * (k % 4), tag=('x', k))
        XPRE = 8
        for k in range(XPRE):
            xload(k)
        g.I('s_waitcnt', f'vmcnt({XPRE})')
        g.I('s_barrier')
        stamp()
        g.I('v_mov_b32', vTr[0], vLanePart)
        g.I('v_add_u32', vTr[1], SLOT, vLanePart)
        g.I('s_mov_b32', sSlotRd, SLOT)

        def issue_frag(f, base, tagp):
            r = ring[f % DEPTH]
            g.ds_read('ds_read_b64_tr_b16', r[0:2], base, offset=1024 * f, tag=(tagp, f, 0))
            g.ds_read('ds_read_b64_tr_b16', r[2:4], base, offset=1024 * f + 256, tag=(tagp, f, 1))

        def epilogue_ops(acc):
            ops = []
            def addr():
                if kind == 'f':
                    g.I('s_lshl_b32', sEpi, sNt, 11)
                    g.I('s_add_u32', sEpi, sEpi, sOutBase)
                else:
                    g.I('s_lshr_b32', sEpi, sNt, 2)
                    g.I('s_lshl_b32', sEpi, sEpi, 19)
                    g.I('s_and_b32', sEpi2, sNt, 3)
                    g.I('s_lshl_b32', sEpi2, sEpi2, 11 if kind == 'qk' else 10)
                    g.I('s_add_u32', sEpi, sEpi, sEpi2)
                    g.I('s_add_u32', sEpi, sEpi, sOutBase)
                    if kind == 'v':
                        g.I('s_add_u32', sEpi2, sEpi, 4096)
                g.I('s_add_u32', sNt, sNt, 1)
            ops.append(addr)
            if kind == 'f':
                for e0 in range(0, 16, 4):
                    es = list(range(e0, e0 + 4))
                    ops.append(lambda es=es: [g.I('v_mul_f32', gt[i], acc[e], acc[e]) for i, e in enumerate(es)])
                    ops.append(lambda es=es: [g.I('v_fma_f32', gt[i], gt[i], sC2, vC1) for i, e in enumerate(es)])
                    ops.append(lambda es=es: [g.I('v_mul_f32', gt[i], gt[i], acc[e]) for i, e in enumerate(es)])
                    ops.append(lambda es=es: [g.I('v_exp_f32', gt[i], gt[i]) for i, e in enumerate(es)])
                    ops.append(lambda es=es: [g.I('v_add_f32', gt[i], 1.0, gt[i]) for i, e in enumerate(es)])
                    ops.append(lambda es=es: [g.I('v_rcp_f32', gt[i], gt[i]) for i, e in enumerate(es)])
                    ops.append(lambda es=es: [g.I('v_mul_f32', acc[e], acc[e], gt[i]) for i, e in enumerate(es)])
            for k in range(8):
                ops.append(lambda k=k: g.I('v_cvt_pk_bf16_f32', pk[k], acc[2 * k], acc[2 * k + 1]))
            if kind == 'v':
                ops.append(lambda: g.buf_store('dwordx4', pk[0:4], vOut, srdO, sEpi, tag='st'))
                ops.append(lambda: g.buf_store('dwordx4', pk[4:8], vOut, srdO, sEpi2, tag='st'))
            else:
                ops.append(lambda: g.buf_store('dwordx4', pk[0:4], vOut, srdO, sEpi, tag='st'))
                ops.append(lambda: g.buf_store('dwordx4', pk[4:8], vOut, srdO, sEpi, offset=1024, tag='st'))
            return ops

        XPRE_ = XPRE; xl = xload

        def iteration(acc, prev, bC, bN, first):
            if not first:
                g.wait_vm_n(6)
                g.I('s_barrier')
                stamp()
            dml = dma_tile(spread=True)
            fill = [] if first else epilogue_ops(prev)
            fi = 0
            per = max(1, math.ceil(len(fill) / 26)) if fill else 0
            if kind == 'f':
                g.ds_read('ds_read_u16', vBblk[0], vBaddr, tag='b')
                g.I('v_add_u32', vBaddr, 64, vBaddr)
            for st in range(32):
                f = st + DEPTH - 1
                if f < 32:
                    issue_frag(f, bC, 'c')
                else:
                    issue_frag(f - 32, bN, 'n')
                g.wait_lds(('c', st, 1))
                if first:
                    if st + XPRE_ < 32:
                        xl(st + XPRE_)
                    g.wait_vm(('x', st))
                w = ring[st % DEPTH]
                xs = X[4 * st:4 * st + 4]
                c = 0 if st == 0 else acc
                if kind == 'v':
                    g.I('v_mfma_f32_32x32x16_bf16', acc, xs, w, c)
                else:
                    g.I('v_mfma_f32_32x32x16_bf16', acc, w, xs, c)
                if st < len(dml):
                    dml[st]()
                if st >= 4:
                    for _ in range(per):
                        if fi < len(fill):
                            fill[fi](); fi += 1
            while fi < len(fill):
                fill[fi](); fi += 1
            if kind == 'f':
                g.wait_lds('b')
                g.I('v_mfma_f32_32x32x16_bf16', acc, vBblk, vOnes, acc)
            g.lds_q = [('c',) + t[1:] if (isinstance(t, tuple) and t[0] == 'n') else t for t in g.lds_q]
            g.I('s_add_u32', sSlotRd, sSlotRd, SLOT)
            g.I('s_and_b32', sSlotRd, sSlotRd, RING * SLOT - 1)
            g.I('v_add_u32', bC, sSlotRd, vLanePart)

        def final_epilogue(acc):
            stamp()
            g.I('s_nop', 15)
            for op in epilogue_ops(acc):
                op()
            g.wait_vm_all()
            stamp()

        for f in range(DEPTH - 1):
            issue_frag(f, vTr[0], 'c')
        q0 = list(g.lds_q)
        iteration(accA, None, vTr[0], vTr[1], True)
        assert g.lds_q == q0, (g.lds_q, q0)
        g.I('s_sub_u32', sIter, sCnt, 1)
        g.label(Lloop)
        iteration(accB, accA, vTr[1], vTr[0], False)
        assert g.lds_q == q0
        g.I('s_sub_u32', sIter, sIter, 1)
        g.I('s_cmp_eq_u32', sIter, 0)
        g.I('s_cbranch_scc1', LendB)
        iteration(accA, accB, vTr[0], vTr[1], False)
        assert g.lds_q == q0
        g.I('s_sub_u32', sIter, sIter, 1)
        g.I('s_cmp_lg_u32', sIter, 0)
        g.I('s_cbranch_scc1', Lloop)
        g.label(LendA)
        final_epilogue(accA)
        g.I('s_branch', L_end)
        g.label(LendB)
        final_epilogue(accB)
        g.I('s_branch', L_end)

    Lv = "proj_type_v"; Lf = "proj_type_f"
    g.I('s_cmp_eq_u32', sType, 2)
    g.I('s_cbranch_scc1', Lv)
    g.I('s_cmp_eq_u32', sType, 3)
    g.I('s_cbranch_scc1', Lf)
    save = (list(g.lds_q), list(g.vm_q))
    body('qk')
    g.label(Lv)
    g.lds_q, g.vm_q = list(save[0]), list(save[1])
    body('v')
    g.label(Lf)
    g.lds_q, g.vm_q = list(save[0]), list(save[1])
    body('f')
    g.label(L_end)
    g.I('s_endpgm')
    probs = g.verify_edges()
    assert not probs, probs
    return g, v.hi, s.hi
```
